```python
import torch

def _softmax(x, axis=-1):
    return torch.softmax(x, dim=axis)
def _gelu(x):
    return torch.nn.functional.gelu(x, approximate="tanh")
def _silu(x):
    return torch.nn.functional.silu(x)
def _sigmoid(x):
    return torch.sigmoid(x)
def _layernorm(x, axis=-1, eps=1e-5):
    m = x.mean(dim=axis, keepdim=True)
    v = x.var(dim=axis, keepdim=True, unbiased=False)
    return (x - m) / torch.sqrt(v + eps)
def _scatter_add(tgt, idx, src, axis=0):
    return tgt.clone().index_add_(axis, idx, src)
def _segment_sum(src, seg, n):
    out = torch.zeros((n,) + src.shape[1:], dtype=src.dtype)
    return out.index_add_(0, seg, src)
def _pad(x, pw):
    flat = tuple(v for pair in reversed(pw) for v in pair)
    return torch.nn.functional.pad(x, flat)

kernel_name = 'recurrent_scan__sliding_block_cached__dense_activation_squared_relu__prompt'

def setup_inputs():

    _w = (lambda a: (lambda t: t.to(torch.bfloat16) if t.is_floating_point() else t)(torch.as_tensor(a)))
    def _A_setup():
        B, Sq, D = 1, 2048, 512
        Hq, Hkv, Sk, Dh = 32, 32, 2048, 128
        assert Hq % Hkv == 0, (Hq, Hkv)
        return {
            "x": _w((lambda *s: torch.randn(*s, dtype=torch.bfloat16) * 0.05)(B, Sq, D)),
            "k_cache": _w((lambda *s: torch.randn(*s, dtype=torch.bfloat16) * 0.8)(B, Hkv, Sk, Dh)),
            "v_cache": _w((lambda *s: torch.randn(*s, dtype=torch.bfloat16) * 0.2)(B, Hkv, Sk, Dh)),
            "wq": _w((lambda *s: torch.randn(*s, dtype=torch.bfloat16) * 0.8)(D, Hq * Dh) * (D ** -0.5)),
            "wo": _w((lambda *s: torch.randn(*s, dtype=torch.bfloat16) * 0.2)(Hq * Dh, D) * ((Hq * Dh) ** -0.5)),
        }
    _A_in = _A_setup()

    def _B_setup():
        B, S, D, F = 1, 2048, 512, 1376
        return {
            "x": _w((lambda *s: torch.randn(*s, dtype=torch.bfloat16) * 0.05)(B, S, D)),
            "w1": _w((lambda *s: torch.randn(*s, dtype=torch.bfloat16) * 0.1)(D, F)),
            "b1": _w((lambda *s: torch.randn(*s, dtype=torch.bfloat16) * 0.8)(F)),
            "w2": _w((lambda *s: torch.randn(*s, dtype=torch.bfloat16) * 0.1)(F, D)),
            "b2": _w((lambda *s: torch.randn(*s, dtype=torch.bfloat16) * 6.4)(D)),
        }
    _B_in = _B_setup()

    return {
        "A_x": _A_in["x"],
        "A_k_cache": _A_in["k_cache"],
        "A_v_cache": _A_in["v_cache"],
        "A_wq": _A_in["wq"],
        "A_wo": _A_in["wo"],
        "B_x": _B_in["x"],
        "B_w1": _B_in["w1"],
        "B_b1": _B_in["b1"],
        "B_w2": _B_in["w2"],
        "B_b2": _B_in["b2"],
    }

def reference(A_x, A_k_cache, A_v_cache, A_wq, A_wo, B_x, B_w1, B_b1, B_w2, B_b2):
    def _A_ref(x, k_cache, v_cache, wq, wo):
        B, Sq, D = x.shape
        Hq, Dh = 32, 128
        Hkv, Sk = k_cache.shape[1], k_cache.shape[2]
        W = min(4096, max(256, Sk // 4))
        rep = Hq // Hkv
        q = (lambda x, *d: x.permute(*d))((x @ wq).reshape(B, Sq, Hq, Dh), 0, 2, 1, 3)
        k = (lambda x, n, axis: torch.repeat_interleave(x, n, dim=axis))(k_cache[:, :, Sk - W:, :], rep, axis=1)
        v = (lambda x, n, axis: torch.repeat_interleave(x, n, dim=axis))(v_cache[:, :, Sk - W:, :], rep, axis=1)
        scores = torch.einsum("bhqd,bhkd->bhqk", q, k) * (Dh ** -0.5)
        p = _softmax(scores, axis=-1)
        o = torch.einsum("bhqk,bhkd->bhqd", p, v)
        return (lambda x, *d: x.permute(*d))(o, 0, 2, 1, 3).reshape(B, Sq, Hq * Dh) @ wo

    def _B_ref(x, w1, b1, w2, b2):
        h = torch.einsum("bsd,df->bsf", x, w1) + b1
        zero = torch.zeros_like(h)
        r = torch.where(h > zero, h, zero)
        h = r * r
        out = torch.einsum("bsf,fd->bsd", h, w2) + b2
        return out

    x = A_x
    xn = _layernorm(x, axis=-1)
    s = _A_ref(xn, A_k_cache, A_v_cache, A_wq, A_wo)
    g = _silu(_B_ref(xn, B_w1, B_b1, B_w2, B_b2))
    return x + s * g
```

```python
import re

class I:
    __slots__ = ("text", "tag", "rd", "wr", "note")
    def __init__(self, text, tag=None, rd=None, wr=None, note=None):
        self.text = text; self.tag = tag; self.rd = rd; self.wr = wr; self.note = note
    def __repr__(self): return f"I({self.text})"

class WaitVM:
    def __init__(self, *tags): self.tags = tags
class WaitLG:
    def __init__(self, *tags): self.tags = tags
class Label:
    def __init__(self, name): self.name = name
class Raw:
    def __init__(self, text): self.text = text

REG = re.compile(r"^(-|abs\()?([vas])(\d+|\[(\d+):(\d+)\])\)?$")
def regs_of(op):
    op = op.strip()
    if op in ("vcc", "exec", "m0", "scc"): return [op]
    if op in ("vcc_lo", "vcc_hi"): return ["vcc"]
    m = REG.match(op)
    if not m: return []
    k = m.group(2)
    if m.group(4) is not None:
        return [f"{k}{i}" for i in range(int(m.group(4)), int(m.group(5)) + 1)]
    return [f"{k}{int(m.group(3))}"]

def split_ops(text):
    t = text.split(";")[0].strip()
    parts = t.split(None, 1)
    mn = parts[0]
    ops = []
    mods = ""
    if len(parts) > 1:
        raw = [x.strip() for x in parts[1].split(",")]
        fixed = []
        depth = 0
        cur = ""
        for x in raw:
            cur = (cur + "," + x) if cur else x
            if cur.count("[") == cur.count("]") and cur.count("(") == cur.count(")"):
                fixed.append(cur); cur = ""
        for i, x in enumerate(fixed):
            sp = x.split(None, 1)
            ops.append(sp[0])
            if len(sp) > 1: mods += " " + sp[1]
    return mn, ops, mods

TRANS = ("v_exp_f32", "v_log_f32", "v_rcp_f32", "v_rsq_f32", "v_sqrt_f32", "v_sin_f32", "v_cos_f32")
NODST_S = ("s_cmp", "s_waitcnt", "s_barrier", "s_branch", "s_cbranch", "s_nop", "s_setprio", "s_sleep", "s_endpgm", "s_setpc", "s_bitcmp")

class Info:
    pass

def info(text):
    mn, ops, mods = split_ops(text)
    f = Info(); f.mn = mn; f.ops = ops; f.mods = mods
    f.kind = "other"; f.w = []; f.r = []; f.A = f.B = f.C = []; f.passes = 0
    f.states = 1
    R = lambda xs: [r for x in xs for r in regs_of(x)]
    if mn.startswith("v_mfma"):
        f.kind = "mfma"; f.w = R(ops[:1]); f.A = R(ops[1:2]); f.B = R(ops[2:3]); f.C = R(ops[3:4]); f.r = f.A + f.B + f.C
        f.passes = 8 if "32x32x16" in mn else 4 if "16x16x32" in mn else None
        assert f.passes
    elif mn.startswith("v_"):
        f.kind = "valu"
        if mn.startswith("v_permlane") and "swap" in mn:
            f.w = R(ops[:2]); f.r = R(ops[:2])
        elif mn == "v_nop":
            pass
        else:
            f.w = R(ops[:1]); f.r = R(ops[1:])
            if mn.startswith(("v_fmac", "v_dot2c", "v_pk_fmac", "v_writelane")): f.r += f.w
            if mn.startswith(("v_add_co", "v_sub_co", "v_addc_co", "v_subb_co")):
                f.w = R(ops[:2]); f.r = R(ops[2:])
            if "dpp" in mn or "row_" in mods or "quad_perm" in mods: f.dpp = True
        f.trans = mn.replace("_e32", "").replace("_e64", "") in TRANS
    elif mn.startswith("ds_"):
        f.kind = "ds"
        if mn.startswith(("ds_read", "ds_swizzle", "ds_bpermute", "ds_permute")):
            f.w = R(ops[:1]); f.r = R(ops[1:])
        else:
            f.r = R(ops)
    elif mn.startswith(("buffer_", "global_")):
        f.kind = "vmem"
        f.lds = bool(re.search(r"\blds\b", mods)) or "_lds_" in mn
        f.store = "store" in mn
        if mn in ("buffer_inv", "buffer_wbl2"):
            pass
        elif "load" in mn and not f.lds:
            f.w = R(ops[:1]); f.r = R(ops[1:])
        elif "atomic" in mn and re.search(r"\bsc0\b", mods):
            f.w = R(ops[:1]); f.r = R(ops)
        else:
            f.r = R(ops)
            if f.lds: f.r.append("m0")
        f.wide = f.store and ("x3" in mn or "x4" in mn)
        if f.wide:
            f.data = R(ops[:1]) if mn.startswith("buffer") else R(ops[1:2])
    elif mn.startswith("s_"):
        f.kind = "salu"
        if mn.startswith(("s_load", "s_memtime", "s_memrealtime", "s_buffer_load")):
            f.kind = "smem"; f.w = R(ops[:1]); f.r = R(ops[1:])
        elif mn.startswith(NODST_S):
            f.r = R(ops)
            if mn == "s_nop": f.states = int(ops[0], 0) + 1
            if "vcc" in mn: f.r.append("vcc")
        else:
            f.w = R(ops[:1]); f.r = R(ops[1:])
            if "saveexec" in mn: f.w.append("exec")
    else:
        raise ValueError("unknown instr: " + text)
    return f

def finalize(stream):
    out = []; vm = []; lg = []
    seen = set()
    def emit_wait(vmn, lgn):
        pv = pl = None
        if out and isinstance(out[-1], I) and out[-1].text.startswith("s_waitcnt") and out[-1].note == "auto":
            t = out.pop().text
            m = re.search(r"vmcnt\((\d+)\)", t); pv = int(m.group(1)) if m else None
            m = re.search(r"lgkmcnt\((\d+)\)", t); pl = int(m.group(1)) if m else None
        if pv is not None: vmn = pv if vmn is None else min(vmn, pv)
        if pl is not None: lgn = pl if lgn is None else min(lgn, pl)
        s = "s_waitcnt"
        if vmn is not None: s += f" vmcnt({vmn})"
        if lgn is not None: s += f" lgkmcnt({lgn})"
        out.append(I(s, note="auto"))
    for x in stream:
        if isinstance(x, (WaitVM, WaitLG)):
            q = vm if isinstance(x, WaitVM) else lg
            cap = 63 if isinstance(x, WaitVM) else 15
            if not x.tags:
                if not q: continue
                n = 0
            else:
                for t in x.tags:
                    assert t in seen, f"wait on never-issued tag {t}"
                idx = [i for i, t in enumerate(q) if t in x.tags]
                if not idx: continue
                n = min(len(q) - 1 - max(idx), cap)
            if isinstance(x, WaitLG) and "SMEM" in q: n = 0
            del q[:len(q) - n]
            if isinstance(x, WaitVM): emit_wait(n, None)
            else: emit_wait(None, n)
            continue
        if isinstance(x, I):
            f = info(x.text)
            if x.tag is not None: seen.add(x.tag)
            if f.kind == "vmem":
                vm.append(x.tag)
            elif f.kind == "ds": lg.append(x.tag)
            elif f.kind == "smem": lg.append("SMEM")
            elif f.mn == "s_waitcnt":
                m = re.search(r"vmcnt\((\d+)\)", x.text)
                if m: del vm[:max(0, len(vm) - int(m.group(1)))]
                m = re.search(r"lgkmcnt\((\d+)\)", x.text)
                if m: del lg[:max(0, len(lg) - int(m.group(1)))]
        out.append(x)
    return out

def check(stream, name=""):
    errs = []
    hist = []
    vm = []; lg = []
    pend = {}
    dma_state = {}
    rd_state = {}
    maxvm = 0
    for n, x in enumerate(stream):
        if not isinstance(x, I): continue
        f = info(x.text)
        def err(msg): errs.append(f"{name}[{n}] {x.text}: {msg}")
        for r in f.r + f.w:
            if r in pend: err(f"touches {r} pending from load {pend[r].text}")
        d = 0
        for (g, y) in reversed(hist):
            if d >= 20: break
            need = 0; why = ""
            gw = set(g.w)
            if g.kind == "valu":
                vw = {r for r in gw if r[0] in "va" and r != "vcc"}
                sw = {r for r in gw if r[0] == "s" or r == "vcc"}
                if f.kind == "mfma" and vw & set(f.r): need, why = 2, "valu->mfma"
                if f.kind == "valu" and g.trans and not f.trans and vw & set(f.r): need, why = max(need, 1), "trans->valu"
                if f.kind == "valu" and g.trans and f.trans and vw & set(f.r): need, why = max(need, 1), "trans->trans(conservative)"
                if f.kind == "valu" and f.mn.startswith("v_permlane") and vw & set(f.r): need, why = 2, "valu->permlane"
                if f.kind == "valu" and getattr(f, "dpp", False) and vw & set(f.r): need, why = 2, "valu->dpp"
                if f.kind == "valu" and f.mn.startswith(("v_readfirstlane", "v_readlane")) and vw & set(f.r): need, why = max(need, 1), "valu->readlane"
                if f.kind == "valu" and sw & set(f.r): need, why = max(need, 2), "valu sgpr->valu"
                if f.kind == "vmem" and sw & set(f.r): need, why = 5, "valu sgpr->vmem"
                if f.kind in ("salu", "smem") and sw & set(f.r) and not f.mn.startswith("s_cbranch"): need, why = max(need, 1), "valu sgpr->salu(conservative)"
                if "exec" in gw and f.kind == "mfma": need, why = 4, "exec->mfma"
            if g.kind == "salu" and "m0" in gw and f.kind == "vmem" and getattr(f, "lds", False): need, why = 1, "m0->dma"
            if g.kind == "salu" and "exec" in gw and f.kind == "valu" and getattr(f, "dpp", False): need, why = 1, "exec->dpp"
            if g.kind == "mfma":
                p = g.passes
                big = {4: 8, 8: 12}[p]; ovl = {4: 6, 8: 10}[p]; war = {4: 3, 8: 7}[p]
                if f.kind == "mfma":
                    if gw & (set(f.A) | set(f.B)): need, why = big, "mfma D->AB"
                    if gw & set(f.C):
                        if not (f.C == g.w and f.passes == g.passes): need, why = max(need, ovl), "mfma D->C overlap"
                    elif gw & set(f.w): need, why = max(need, ovl), "mfma WAW"
                elif f.kind in ("valu", "vmem", "ds"):
                    if gw & (set(f.r) | set(f.w)): need, why = big, "mfma D->valu/mem"
                    if f.kind == "valu" and set(g.C) & set(f.w): need, why = max(need, war), "mfma C WAR"
                    if f.kind in ("vmem", "ds") and set(g.C) & set(f.w): need, why = max(need, war), "mfma C WAR(load)"
            if g.kind == "vmem" and getattr(g, "wide", False) and set(g.data) & set(f.w) and f.kind in ("valu", "mfma", "ds", "vmem"):
                need, why = max(need, 2), "store data WAR"
            if need > d: err(f"needs {need} wait states after [{y.text}] ({why}), has {d}")
            d += g.states
        if f.mn == "s_waitcnt":
            m = re.search(r"vmcnt\((\d+)\)", x.text)
            if m:
                k = int(m.group(1))
                while len(vm) > k:
                    y, g = vm.pop(0)
                    for r in g.w: pend.pop(r, None)
                    if y.wr is not None and dma_state.get(y.wr) and not any(z.wr == y.wr for z, _ in vm): dma_state[y.wr] = "landed"
            m = re.search(r"lgkmcnt\((\d+)\)", x.text)
            if m:
                k = int(m.group(1))
                if any(g.kind == "smem" for _, g in lg) and k != 0: err("counted lgkmcnt with SMEM outstanding")
                while len(lg) > k:
                    y, g = lg.pop(0)
                    for r in g.w: pend.pop(r, None)
                    if y.rd is not None and not any(z.rd == y.rd for z, _ in lg): rd_state[y.rd] = "done"
                    if y.wr is not None and not any(z.wr == y.wr for z, _ in lg): dma_state[y.wr] = "landed"
        elif f.mn == "s_barrier":
            for k in dma_state:
                if dma_state[k] == "landed": dma_state[k] = "visible"
            for k in rd_state:
                if rd_state[k] == "done": rd_state[k] = "safe"
        elif f.kind == "vmem":
            vm.append((x, f)); maxvm = max(maxvm, len(vm))
            for r in f.w: pend[r] = x
            if x.wr is not None:
                slot = x.wr[0]
                for k, st in rd_state.items():
                    if k[0] == slot and k != x.wr and st != "safe": err(f"DMA into {x.wr} while reads of {k} are {st}")
                dma_state[x.wr] = "inflight"
        elif f.kind in ("ds", "smem"):
            lg.append((x, f))
            for r in f.w: pend[r] = x
            if x.rd is not None:
                if dma_state.get(x.rd) != "visible": err(f"LDS read of {x.rd} in state {dma_state.get(x.rd)}")
                for k, st in dma_state.items():
                    if k[0] == x.rd[0] and k != x.rd and k[1] > x.rd[1]: err(f"LDS read of {x.rd} after overwritten by {k}")
                rd_state[x.rd] = "inflight"
            if x.wr is not None:
                slot = x.wr[0]
                for k, st in rd_state.items():
                    if k[0] == slot and k != x.wr and st != "safe": err(f"LDS write into {x.wr} while reads of {k} are {st}")
                dma_state[x.wr] = "inflight"
        hist.append((f, x))
        if len(hist) > 40: hist.pop(0)
    if maxvm > 63: errs.append(f"{name}: max outstanding vm ops {maxvm} > 63 (issue stalls)")
    return errs

def render(stream):
    out = []
    for x in stream:
        if isinstance(x, I): out.append("    " + x.text)
        elif isinstance(x, Label): out.append(x.name + ":")
        elif isinstance(x, Raw): out.append(x.text)
        else: raise ValueError(x)
    return "\n".join(out) + "\n"

def cost(x):
    if isinstance(x, (WaitVM, WaitLG)): return 4
    if not isinstance(x, I): return 0
    f = info(x.text)
    if f.kind == "mfma": return 8
    if f.kind == "valu" and f.trans: return 8
    return 4 * f.states

def weave(mfmas, gaps):
    out = []
    for k, m in enumerate(mfmas):
        if isinstance(m, list): out.extend(m)
        else: out.append(m)
        if k < len(gaps): out.extend(gaps[k])
    for k in range(len(mfmas), len(gaps)): out.extend(gaps[k])
    return out

def spread(items, n, start=0, end=None):
    end = n if end is None else end
    g = [[] for _ in range(n)]
    m = end - start
    L = len(items)
    for i, it in enumerate(items):
        k = start + (i * m) // L
        if isinstance(it, list): g[k].extend(it)
        else: g[k].append(it)
    return g

def merge(*gs):
    n = max(len(g) for g in gs)
    return [sum((g[k] if k < len(g) else [] for g in gs), []) for k in range(n)]
```

```python
from asmlib import *
import struct, math

def f2u(x): return struct.unpack("<I", struct.pack("<f", x))[0]
def hexf(x): return f"0x{f2u(x):08x}"

CSC = math.log2(math.e) / math.sqrt(128.0)
XN_OFF = 0
H_OFF = 2 << 20
O_OFF = 8 << 20
PART_OFF = 24 << 20
STAMP_OFF = 48 << 20
WS_BYTES = 268435456

WS, WQ, W1, KS, VS, WO, W2, XS, OUT, B1, B2 = 8, 12, 16, 20, 24, 28, 32, 36, 40, 44, 48
P_X, P_K, P_V, P_WQ, P_WO, P_BX, P_W1, P_B1, P_W2, P_B2, P_OUT, P_DBG, P_WS = 64, 66, 68, 70, 72, 74, 76, 78, 80, 82, 84, 86, 88
def srd(b): return f"s[{b}:{b+3}]"
def vr(b, n=4): return f"v[{b}:{b+n-1}]"
def ar(b, n=4): return f"a[{b}:{b+n-1}]"

def load_ptrs():
    return [I("s_load_dwordx16 s[64:79], s[0:1], 0"),
            I("s_load_dwordx8 s[80:87], s[0:1], 64"),
            I("s_load_dwordx2 s[88:89], s[0:1], 96")]

def make_srd(d, p, nbytes, off_sgpr=None, off_imm=0, size_minus_off=False):
    o = []
    if off_sgpr is None and off_imm == 0:
        o += [I(f"s_mov_b32 s{d}, s{p}"), I(f"s_mov_b32 s{d+1}, s{p+1}")]
    elif off_sgpr is None:
        o += [I(f"s_add_u32 s{d}, s{p}, {off_imm}"), I(f"s_addc_u32 s{d+1}, s{p+1}, 0")]
    else:
        o += [I(f"s_add_u32 s{d}, s{p}, s{off_sgpr}"), I(f"s_addc_u32 s{d+1}, s{p+1}, 0")]
    if size_minus_off:
        o += [I(f"s_sub_u32 s{d+2}, {nbytes}, s{off_sgpr}")]
    else:
        o += [I(f"s_mov_b32 s{d+2}, {nbytes}")]
    o += [I(f"s_mov_b32 s{d+3}, 0x20000")]
    return o

def stamp(k):
    o = [I("s_memtime s[98:99]"), I("s_memrealtime s[100:101]"), I("s_waitcnt lgkmcnt(0)"), I(f"s_mov_b32 s{90+k}, s98")]
    o.append(I(f"s_mov_b32 s{70+k if k else 97}, s100"))
    return o

def kernel_text(name, items, extra=()):
    s = f".globl {name}\n.p2align 8\n.type {name},@function\n{name}:\n"
    fin = finalize(items)
    errs = check(fin, name)
    s += render(fin)
    for (nm, sub) in extra:
        f2 = finalize(sub)
        errs += check(f2, nm)
        s += render(f2)
    return s, errs, fin

def desc(name, vgpr, sgpr, accum):
    return f""".p2align 6
.amdhsa_kernel {name}
  .amdhsa_next_free_vgpr {vgpr}
  .amdhsa_next_free_sgpr {sgpr}
  .amdhsa_accum_offset {accum}
  .amdhsa_group_segment_fixed_size 0
  .amdhsa_kernarg_size 104
  .amdhsa_user_sgpr_count 2
  .amdhsa_user_sgpr_kernarg_segment_ptr 1
  .amdhsa_system_sgpr_workgroup_id_x 1
.end_amdhsa_kernel
"""
```

```python
from common import *

QA = lambda t: 16 * t
QB = lambda t: 64 + 16 * t
HXA, HXB, HYA = 128, 144, 160
ASET = lambda p, f: 176 + 24 * p + 4 * f
SA = [176, 128]; SB = [192, 144]; NEGA = 160; NEGB = 208
TRA = 224; TRW = 228; VWQ = 229; VW1X = 233; VW1Y = 234; LANE16 = 235
KRD = 236; VK = 244; VV = 248; LA = 249; LB = 250; MXA = 251; MXB = 252; T0, T1, T2 = 253, 254, 255
XN = lambda s, tile: 8 * s + 4 * tile
QF = lambda tile, s: 32 * tile + 4 * s
KF = lambda s: 64 + 4 * s
VF = lambda ks, t: 96 + 4 * (4 * ks + t)
SW, SHEAD, SRT, STA, STB = 3, 4, 5, 6, 7
SXA, SXB, SWQ, SW1, SKV, SWL4, SWL2, ST, SRET, STH, ST2 = 52, 53, 54, 55, 56, 57, 58, 59, 60, 62, 63
LDS_W1 = 65536; LDS_K = 98304
THRESH = 10.0

MF = "v_mfma_f32_32x32x16_bf16"
def mfma(d, a, b, c):
    return I(f"{MF} {d}, {a}, {b}, {c}")

def is_mem(x): return isinstance(x, I) and info(x.text).kind in ("ds", "vmem")
def is_scalar(x): return isinstance(x, (WaitVM, WaitLG)) or (isinstance(x, I) and info(x.text).kind == "salu")
def slots(x):
    if isinstance(x, (WaitVM, WaitLG)): return 1
    if not isinstance(x, I): return 0
    f = info(x.text)
    if f.kind == "mfma" or f.kind == "vmem" or (f.kind == "valu" and f.trans): return 2
    return f.states

def order_gap(items):
    sc = [x for x in items if is_scalar(x)]
    me = [x for x in items if is_mem(x)]
    va = [x for x in items if not is_scalar(x) and not is_mem(x)]
    w = [x for x in sc if isinstance(x, (WaitVM, WaitLG))]
    nw = [x for x in sc if not isinstance(x, (WaitVM, WaitLG))]
    return w + nw + me + va

def pack(mfmas, fillers, need=None, earliest=None, heads=None, budget=6):
    need = need or {}; earliest = earliest or {}; heads = heads or {}
    out = []; p = 0; defer = []
    for k, m in enumerate(mfmas):
        while p < need.get(k, 0):
            if is_mem(fillers[p]): defer.append(fillers[p])
            else: out.append(fillers[p])
            p += 1
        out.append(m)
        h = order_gap(list(heads.get(k, [])) + defer); defer = []
        out.extend(h)
        c = sum(slots(x) for x in h) - (1 if h and is_scalar(h[0]) else 0)
        while p < len(fillers) and earliest.get(p, 0) <= k:
            x = fillers[p]
            if is_mem(x): defer.append(x); p += 1; continue
            if c + slots(x) > budget: break
            c += slots(x); out.append(x); p += 1
    return out, defer + fillers[p:]

def decode_ids():
    o = []; A = lambda t, **k: o.append(I(t, **k))
    A("v_lshrrev_b32 v1, 6, v0")
    A("s_and_b32 s52, s2, 7")
    A("v_readfirstlane_b32 s3, v1")
    A("s_lshr_b32 s53, s2, 3")
    A("s_and_b32 s54, s52, 3")
    A("s_lshl_b32 s54, s54, 3")
    A("s_and_b32 s55, s53, 7")
    A(f"s_add_u32 s{SHEAD}, s54, s55")
    A("s_lshr_b32 s54, s52, 2")
    A("s_lshl_b32 s54, s54, 2")
    A("s_lshr_b32 s55, s53, 3")
    A(f"s_add_u32 s{SRT}, s54, s55")
    A(f"s_lshl_b32 s54, s{SRT}, 3")
    A("s_lshl_b32 s55, s3, 1")
    A("s_add_u32 s54, s54, s55")
    A(f"s_and_b32 s55, s{SHEAD}, 1")
    A(f"s_add_u32 s{STA}, s54, s55")
    A("s_xor_b32 s55, s55, 1")
    A(f"s_add_u32 s{STB}, s54, s55")
    A(f"s_lshl_b32 s{SWL4}, s3, 12")
    A(f"s_lshl_b32 s{SWL2}, s3, 11")
    return o

def lane_consts():
    o = []; A = lambda t, **k: o.append(I(t, **k))
    L, HH, DH, R4, C4, X, Y, RR, SL = 128, 129, 130, 131, 132, 133, 134, 135, 136
    A(f"v_and_b32 v{L}, 63, v0")
    A(f"v_lshlrev_b32 v{LANE16}, 4, v{L}")
    A(f"v_lshrrev_b32 v{HH}, 5, v{L}")
    A(f"v_bfe_u32 v{DH}, v{L}, 4, 1")
    A(f"v_bfe_u32 v{R4}, v{L}, 2, 2")
    A(f"v_and_b32 v{C4}, 3, v{L}")
    A(f"v_and_b32 v{X}, 1, v{C4}"); A(f"v_lshlrev_b32 v{X}, 4, v{X}")
    A(f"v_lshl_add_u32 v{X}, v{DH}, 5, v{X}")
    A(f"v_lshrrev_b32 v{Y}, 1, v{C4}"); A(f"v_lshl_add_u32 v{X}, v{Y}, 3, v{X}")
    A(f"v_lshl_add_u32 v{Y}, v{HH}, 3, v{R4}")
    A(f"v_lshl_add_u32 v{TRW}, v{Y}, 6, v{X}")
    A(f"v_add_u32 v{TRW}, {LDS_W1}, v{TRW}")
    A(f"v_lshl_add_u32 v{TRA}, v{Y}, 8, v{X}")
    A(f"v_lshl_add_u32 v{TRA}, v{R4}, 6, v{TRA}")
    for t in range(1, 4): A(f"v_xor_b32 v{TRA+t}, {64*t}, v{TRA}")
    A(f"v_lshrrev_b32 v{RR}, 4, v{L}"); A(f"v_and_b32 v{SL}, 15, v{L}")
    A(f"v_lshlrev_b32 v{X}, 2, v{RR}"); A(f"v_xor_b32 v{X}, v{X}, v{SL}")
    A(f"v_lshlrev_b32 v{X}, 4, v{X}")
    A(f"v_lshl_add_u32 v{VV}, v{RR}, 8, v{X}"); A(f"v_add_u32 v{VV}, s{SWL4}, v{VV}")
    A(f"v_lshl_add_u32 v{VWQ}, v{RR}, 13, v{X}")
    A(f"s_lshl_b32 s{ST}, s3, 17")
    A(f"v_add_u32 v{VWQ}, s{ST}, v{VWQ}")
    for j in range(1, 4): A(f"v_add_u32 v{VWQ+j}, {j*(32768-1024)}, v{VWQ}")
    A(f"v_xor_b32 v{X}, v{RR}, v{SL}"); A(f"v_lshlrev_b32 v{X}, 4, v{X}")
    A(f"v_lshl_add_u32 v{VK}, v{RR}, 8, v{X}"); A(f"v_add_u32 v{VK}, s{SWL4}, v{VK}")
    for j in range(1, 4): A(f"v_xor_b32 v{VK+j}, {64*j}, v{VK}")
    A(f"v_lshrrev_b32 v{X}, 2, v{L}")
    A(f"s_lshl_b32 s{ST}, s3, 4"); A(f"v_add_u32 v{X}, s{ST}, v{X}")
    A(f"v_mul_u32_u24 v{X}, 2752, v{X}")
    A(f"v_lshl_add_u32 v{X}, v{C4}, 4, v{X}")
    A(f"s_lshl_b32 s{ST}, s{SHEAD}, 6")
    A(f"v_add_u32 v{VW1X}, s{ST}, v{X}")
    A(f"s_lshr_b32 s{ST}, s{SHEAD}, 1"); A(f"s_lshl_b32 s{ST}, s{ST}, 6"); A(f"s_add_u32 s{ST}, s{ST}, {2048-1024}")
    A(f"s_cmp_ge_u32 s{SHEAD}, 22"); A(f"s_cselect_b32 s{ST2}, 0x40000000, 0"); A(f"s_add_u32 s{ST}, s{ST}, s{ST2}")
    A(f"v_add_u32 v{VW1Y}, s{ST}, v{X}")
    A(f"v_and_b32 v{X}, 0x13, v{L}")
    A(f"v_and_b32 v{Y}, 4, v{L}"); A(f"v_lshl_add_u32 v{X}, v{Y}, 1, v{X}")
    A(f"v_and_b32 v{Y}, 8, v{L}"); A(f"v_lshrrev_b32 v{Y}, 1, v{Y}"); A(f"v_add_u32 v{X}, v{X}, v{Y}")
    A(f"v_and_b32 v{Y}, 15, v{X}"); A(f"v_xor_b32 v{Y}, v{Y}, v{HH}"); A(f"v_lshlrev_b32 v{Y}, 4, v{Y}")
    A(f"v_lshl_add_u32 v{KRD}, v{X}, 8, v{Y}"); A(f"v_add_u32 v{KRD}, {LDS_K}, v{KRD}")
    for s in range(1, 8): A(f"v_xor_b32 v{KRD+s}, {32*s}, v{KRD}")
    A(f"v_lshlrev_b32 v{T2}, 4, v{HH}")
    return o

def srds():
    o = []; A = lambda t, **k: o.append(I(t, **k))
    o += make_srd(WS, P_WS, WS_BYTES)
    A(f"s_lshl_b32 s{ST}, s{SHEAD}, 8")
    o += make_srd(WQ, P_WQ, 512 * 8192, off_sgpr=ST, size_minus_off=True)
    o += make_srd(W1, P_W1, 512 * 2752)
    A(f"s_lshl_b32 s{ST}, s{SHEAD}, 19"); A(f"s_add_u32 s{ST}, s{ST}, {1536*256}")
    o += make_srd(KS, P_K, 131072, off_sgpr=ST)
    o += make_srd(VS, P_V, 131072, off_sgpr=ST)
    o += make_srd(B1, P_B1, 2752)
    return o

def xn_ops(s):
    c, sp = divmod(s, 4)
    g = []
    for tile, sg in ((0, SXA), (1, SXB)):
        pre = [I(f"s_add_u32 s{sg}, s{sg}, 4096")] if (sp == 0 and c > 0) else []
        g.append(pre + [I(f"buffer_load_dwordx4 {ar(XN(s, tile))}, v{LANE16}, {srd(WS)}, s{sg} offen offset:{1024*sp}", tag=f"xn{s}")])
    return g

def w_ops(c):
    slot = c % 4
    g = []
    for j in range(4):
        pre = [I(f"s_add_u32 m0, s{SWL4}, {slot*16384}"), I(f"s_mov_b32 s{SWQ}, {c*64*8192}")] if j == 0 else []
        g.append(pre + [I(f"buffer_load_dwordx4 v{VWQ+j}, {srd(WQ)}, s{SWQ} offen offset:{1024*j} lds", tag=f"D{c}", wr=(f"A{slot}", c))])
    g.append([I(f"s_add_u32 m0, s{SWL2}, {LDS_W1 + slot*8192}"), I(f"s_mov_b32 s{SW1}, {c*64*2752}"),
              I(f"buffer_load_dwordx4 v{VW1X}, {srd(W1)}, s{SW1} offen lds", tag=f"D{c}", wr=(f"W{slot}", c))])
    g.append([I(f"buffer_load_dwordx4 v{VW1Y}, {srd(W1)}, s{SW1} offen offset:1024 lds", tag=f"D{c}", wr=(f"W{slot}", c))])
    return g
def groups(dma):
    return [dma[0:3], [dma[3]], [dma[4]], [dma[5]]]
flat = lambda gs: [x for g in gs for x in g]

def k_dma(p):
    slot = p % 4
    o = [I(f"s_add_u32 m0, s{SWL4}, {LDS_K + slot*16384}"), I(f"s_mov_b32 s{SKV}, {p*16384}")]
    for j in range(4):
        o.append(I(f"buffer_load_dwordx4 v{VK+j}, {srd(KS)}, s{SKV} offen offset:{1024*j} lds", tag=f"K{p}", wr=(f"K{slot}", p)))
    return o
def v_dma(p):
    slot = p % 4
    o = [I(f"s_add_u32 m0, s{SWL4}, {slot*16384}"), I(f"s_mov_b32 s{SKV}, {p*16384}")]
    for j in range(4):
        o.append(I(f"buffer_load_dwordx4 v{VV}, {srd(VS)}, s{SKV} offen offset:{1024*j} lds", tag=f"V{p}", wr=(f"A{slot}", 100 + p)))
    return o

def a_reads(s):
    c, sp = divmod(s, 4); slot = c % 4; p = s % 2
    o = []
    for t in range(4):
        for j2 in range(2):
            o.append(I(f"ds_read_b64_tr_b16 {vr(ASET(p, t) + 2*j2, 2)}, v{TRA+t} offset:{slot*16384 + sp*4096 + j2*1024}",
                       tag=f"a{s}_{t}", rd=(f"A{slot}", c)))
    for y in range(2):
        for j2 in range(2):
            o.append(I(f"ds_read_b64_tr_b16 {vr(ASET(p, 4+y) + 2*j2, 2)}, v{TRW} offset:{slot*8192 + sp*2048 + y*1024 + j2*256}",
                       tag=f"a{s}_{4+y}", rd=(f"W{slot}", c)))
    return o

def k_read(i, s):
    p = i // 2
    return I(f"ds_read_b128 {ar(KF(s))}, v{KRD+s} offset:{(i % 8) * 8192}", tag=f"k{i}_{s}", rd=(f"K{p%4}", p))
def v_read(i, ks, t, j2):
    p = i // 2
    return I(f"ds_read_b64_tr_b16 {ar(VF(ks, t) + 2*j2, 2)}, v{TRA+t} offset:{(i % 8) * 8192 + ks*4096 + j2*1024}",
             tag=f"v{i}_{ks}", rd=(f"A{p%4}", 100 + p))

def bias_init():
    o = []; A = lambda t, **k: o.append(I(t, **k))
    ld = []
    ld.append(I(f"s_lshl_b32 s{ST}, s{SHEAD}, 6"))
    ld.append(I(f"buffer_load_dwordx4 v[176:179], v{T2}, {srd(B1)}, s{ST} offen", tag="b1"))
    ld.append(I(f"buffer_load_dwordx4 v[180:183], v{T2}, {srd(B1)}, s{ST} offen offset:32", tag="b1"))
    ld.append(I(f"s_lshr_b32 s{ST}, s{SHEAD}, 1")); ld.append(I(f"s_lshl_b32 s{ST}, s{ST}, 6")); ld.append(I(f"s_add_u32 s{ST}, s{ST}, 2048"))
    ld.append(I(f"buffer_load_dwordx4 v[184:187], v{T2}, {srd(B1)}, s{ST} offen", tag="b1"))
    ld.append(I(f"buffer_load_dwordx4 v[188:191], v{T2}, {srd(B1)}, s{ST} offen offset:32", tag="b1"))
    o.append(WaitVM("b1"))
    A(f"s_mov_b32 s{ST}, {hexf(CSC)}")
    for (src, dst) in ((176, HXA), (184, HYA)):
        for m in range(8):
            A(f"v_lshlrev_b32 v{dst+2*m}, 16, v{src+m}")
            A(f"v_and_b32 v{dst+2*m+1}, 0xffff0000, v{src+m}")
        for r in range(16): A(f"v_mul_f32 v{dst+r}, s{ST}, v{dst+r}")
    for r in range(16): A(f"v_mov_b32 v{HXB+r}, v{HXA+r}")
    return ld, o

def qconv(acc, tile, t):
    o = []
    for m in range(0, 8, 2):
        o.append(I(f"v_cvt_pk_bf16_f32 v{T0}, v{acc+2*m}, v{acc+2*m+1}"))
        o.append(I(f"v_cvt_pk_bf16_f32 v{T1}, v{acc+2*m+2}, v{acc+2*m+3}"))
        o.append(I(f"v_accvgpr_write_b32 a{QF(tile, 2*t) + m}, v{T0}"))
        o.append(I(f"v_accvgpr_write_b32 a{QF(tile, 2*t) + m + 1}, v{T1}"))
    return o

def h_epi(acc, soff_setup, mods=""):
    o = list(soff_setup)
    for half in range(2):
        b = acc + 8 * half
        for r in range(8): o.append(I(f"v_max_f32 v{b+r}, 0, v{b+r}"))
        for r in range(8): o.append(I(f"v_mul_f32 v{b+r}, v{b+r}, v{b+r}"))
        for m in range(4): o.append(I(f"v_cvt_pk_bf16_f32 v{b+m}, v{b+2*m}, v{b+2*m+1}"))
        o.append(I(f"buffer_store_dwordx4 {vr(b)}, v{LANE16}, {srd(WS)}, s{ST2} offen offset:{1024*half}{mods}", tag="hst"))
    return o
def h_soff(tile_sgpr, y):
    o = [I(f"s_mul_i32 s{ST2}, s{tile_sgpr}, {86*1024}")]
    if not y:
        o += [I(f"s_lshl_b32 s{ST}, s{SHEAD}, 11"), I(f"s_add_u32 s{ST2}, s{ST2}, s{ST}"), I(f"s_add_u32 s{ST2}, s{ST2}, {H_OFF}")]
    else:
        o += [I(f"s_lshr_b32 s{ST}, s{SHEAD}, 1"), I(f"s_lshl_b32 s{ST}, s{ST}, 11"), I(f"s_add_u32 s{ST2}, s{ST2}, s{ST}"),
              I(f"s_add_u32 s{ST2}, s{ST2}, {H_OFF + 32*2048}"),
              I(f"s_cmp_ge_u32 s{SHEAD}, 22"), I(f"s_cselect_b32 s{ST2}, 0x20000000, s{ST2}")]
    return o

def maxchain(S, mx, first=False):
    o = []
    for k in range(8):
        if first and k == 0: o.append(I(f"v_max_f32 v{mx}, v{S}, v{S+1}"))
        else: o.append(I(f"v_max3_f32 v{mx}, v{mx}, v{S+2*k}, v{S+2*k+1}"))
    return o
def init_tile(S, mx, neg, l):
    o = [I(f"v_mov_b32 v{T2}, v{mx}"), I(f"v_mov_b32 v{l}, 0"), I("s_nop 0"), I(f"v_permlane32_swap_b32 v{mx}, v{T2}"),
         I(f"v_max_f32 v{T2}, v{mx}, v{T2}"), I(f"v_mov_b32 v{mx}, 0")]
    for r in range(16): o.append(I(f"v_sub_f32 v{neg+r}, 0, v{T2}"))
    for r in range(16): o.append(I(f"v_sub_f32 v{S+r}, v{S+r}, v{T2}"))
    return o

def sm_half(S, h2, l):
    b = S + 8 * h2
    g = [[] for _ in range(9)]
    for j in range(8): g[j].append(I(f"v_exp_f32 v{b+j}, v{b+j}"))
    for j in range(8): g[j+1].append(I(f"v_add_f32 v{l}, v{l}, v{b+j}"))
    for m in range(4): g[2*m+2].append(I(f"v_cvt_pk_bf16_f32 v{b+m}, v{b+2*m}, v{b+2*m+1}"))
    return g

def rare(name, S, mx, neg, l, obase):
    o = [Label(name), I("s_nop 15"), I(f"v_mov_b32 v{T2}, v{mx}"), I("s_nop 1"), I(f"v_permlane32_swap_b32 v{mx}, v{T2}"),
         I(f"v_max_f32 v{mx}, v{mx}, v{T2}"), I(f"v_max_f32 v{mx}, 0, v{mx}"), I(f"v_exp_f32 v{T2}, -v{mx}")]
    for r in range(16): o.append(I(f"v_sub_f32 v{S+r}, v{S+r}, v{mx}"))
    for r in range(16): o.append(I(f"v_sub_f32 v{neg+r}, v{neg+r}, v{mx}"))
    o.append(I(f"v_mul_f32 v{l}, v{l}, v{T2}"))
    for r in range(64): o.append(I(f"v_mul_f32 v{obase+r}, v{obase+r}, v{T2}"))
    o += [I("s_nop 1"), I(f"s_setpc_b64 s[{SRET}:{SRET+1}]")]
    return o

def qk(tile, i, first=False):
    S = (SA, SB)[tile][i % 2]; neg = (NEGA, NEGB)[tile]
    o = []
    for s in range(8):
        c = ("0" if first else vr(neg, 16)) if s == 0 else vr(S, 16)
        o.append(mfma(vr(S, 16), ar(KF(s)), ar(QF(tile, s)), c))
    return o
def pv(tile, i):
    S = (SA, SB)[tile][i % 2]; O = (QA, QB)[tile]
    o = []
    for ks in range(2):
        for t in range(4):
            c = "0" if (i == 0 and ks == 0) else vr(O(t), 16)
            o.append(mfma(vr(O(t), 16), ar(VF(ks, t)), vr(S + 8 * ks), c))
    return o

def o_epi(tile, mods=""):
    O = (QA, QB)[tile]; l = (LA, LB)[tile]; ts = (STA, STB)[tile]; tmp = (T0, T1)[tile]
    pre = [I(f"v_mov_b32 v{tmp}, v{l}"), I(f"s_lshl_b32 s{ST2}, s{ts}, 18"), I(f"s_lshl_b32 s{ST}, s{SHEAD}, 13"),
           I(f"v_permlane32_swap_b32 v{l}, v{tmp}"), I(f"v_add_f32 v{l}, v{l}, v{tmp}"), I(f"v_rcp_f32 v{l}, v{l}"),
           I(f"s_add_u32 s{ST2}, s{ST2}, s{ST}"), I(f"s_add_u32 s{ST2}, s{ST2}, {O_OFF}")]
    body = []
    for t in range(4):
        if t == 2: body.append(I(f"s_add_u32 s{ST2}, s{ST2}, 4096"))
        for ks in range(2):
            b = O(t) + 8 * ks
            for r in range(8): body.append(I(f"v_mul_f32 v{b+r}, v{b+r}, v{l}"))
            for m in range(4): body.append(I(f"v_cvt_pk_bf16_f32 v{b+m}, v{b+2*m}, v{b+2*m+1}"))
            body.append(I(f"buffer_store_dwordx4 {vr(b)}, v{LANE16}, {srd(WS)}, s{ST2} offen offset:{((2*t+ks) % 4)*1024}{mods}", tag="ost"))
    return pre, body

def phase_a(pace=2.5):
    NG = 31 * 11
    heads = [[] for _ in range(NG + 11)]
    ops = []
    def M(c): return (4 * c + 2) * 11 + 10
    for c in range(1, 8):
        if c >= 2:
            e = M(c - 3) + 1 if c >= 4 else 0
            ops += [(g, e) for g in w_ops(c)]
        for s_ in range(4 * c, 4 * c + 4): ops += [(g, 0) for g in xn_ops(s_)]
        if c == 7:
            pass
    ops += [(g, 0) for g in groups(k_dma(0))] + [(g, M(5) + 1) for g in groups(v_dma(0))]
    pos = 0.0
    for g, e in ops:
        pos = max(pos, e)
        heads[int(pos)] += g
        pos += pace
    last_issue = int(pos - pace)
    assert last_issue < M(7) - 20, last_issue
    o = []
    for s in range(31):
        c, sp = divmod(s, 4); p = s % 2
        ms = []
        for t in range(4):
            for tile, acc in ((0, QA(t)), (1, QB(t))):
                ms.append(mfma(vr(acc, 16), vr(ASET(p, t)), ar(XN(s, tile)), "0" if s == 0 else vr(acc, 16)))
        ms.append(mfma(vr(HXA, 16), vr(ASET(p, 4)), ar(XN(s, 0)), vr(HXA, 16)))
        ms.append(mfma(vr(HXB, 16), vr(ASET(p, 4)), ar(XN(s, 1)), vr(HXB, 16)))
        ms.append(mfma(vr(HYA, 16), vr(ASET(p, 5)), ar(XN(s, 0)), vr(HYA, 16)))
        gaps = spread(a_reads(s + 1), 11, 0, 9)
        for k in range(11):
            pre = []
            if k == 5: pre.append(WaitLG(f"a{s}_5"))
            if k == 10:
                tg = [f"xn{s+1}"]
                if sp == 2: tg += [f"D{c+1}"] if c < 7 else ["K0", "V0"]
                pre += [WaitVM(*tg)]
                pre += [WaitLG(f"a{s+1}_5")] if s == 30 else [WaitLG(f"a{s+1}_2")]
                if sp == 2: pre.append(I("s_barrier"))
            h = heads[s * 11 + k]
            sc = [x for x in h if is_scalar(x)]; me = [x for x in h if not is_scalar(x)]
            gaps[k] = pre + sc + gaps[k] + me
        o += weave(ms, gaps)
    return o

def phase_b_prologue(hmods=""):
    o = []
    s = 31; p = 1
    ms = []
    for tile, Q in ((0, QA), (1, QB)):
        for t in range(4): ms.append(mfma(vr(Q(t), 16), vr(ASET(p, t)), ar(XN(s, tile)), vr(Q(t), 16)))
    ms.append(mfma(vr(HYA, 16), vr(ASET(p, 5)), ar(XN(s, 0)), vr(HYA, 16)))
    ms.append(mfma(vr(HXA, 16), vr(ASET(p, 4)), ar(XN(s, 0)), vr(HXA, 16)))
    ms.append(mfma(vr(HXB, 16), vr(ASET(p, 4)), ar(XN(s, 1)), vr(HXB, 16)))
    k1 = groups(k_dma(1)); v1 = groups(v_dma(1)); k2_ = groups(k_dma(2)); v2 = groups(v_dma(2)); k3 = groups(k_dma(3))
    heads = {0: [k_read(0, 0), k_read(0, 1)] + k1[0], 1: [k_read(0, 2), k_read(0, 3)] + k1[1], 2: [k_read(0, 4), k_read(0, 5)] + k1[2],
             3: [k_read(0, 6), k_read(0, 7)], 5: k1[3], 7: v1[0], 9: v1[1], 10: [WaitLG("k0_7")]}
    fill = []
    for t in range(4): fill += qconv(QA(t), 0, t)
    body, rest = pack(ms, fill, earliest={0: 3}, heads=heads)
    o += body
    ms = qk(0, 0, first=True)
    done_a = len(fill) - len(rest)
    fill2 = list(rest)
    for t in range(4): fill2 += qconv(QB(t), 1, t)
    need = {s_: max(0, 16 * (s_ // 2 + 1) - done_a) + (2 if 16 * (s_ // 2 + 1) > done_a else 0) for s_ in range(8)}
    body, rest2 = pack(ms, fill2, need=need, heads={1: v1[2], 4: v1[3]})
    o += body
    ms = qk(1, 0, first=True)
    done_b = 64 - len(rest2)
    fill3 = list(rest2) + h_epi(HYA, h_soff(STA, True), hmods) + maxchain(SA[0], MXA, first=True)
    need = {s_: max(0, 16 * (s_ // 2 + 1) - done_b) + (2 if 16 * (s_ // 2 + 1) > done_b else 0) for s_ in range(8)}
    body, rest3 = pack(ms, fill3, need=need, heads={s_: [k_read(1, s_)] for s_ in range(8)})
    o += body + rest3
    o += init_tile(SA[0], MXA, NEGA, LA)
    o += h_epi(HXA, h_soff(STA, False), hmods)
    g = sm_half(SA[0], 0, LA)
    mc = maxchain(SB[0], MXB, first=True)
    for k in range(8):
        o += g[k]
        if k % 2 == 1: o.append(mc[k // 2])
    o.append(WaitLG("k1_3"))
    return o, g[8], flat([k2_, v2, k3])

def phase_b(spill, dmaq, hmods="", omods="", name="attn", stamps=None):
    o = []
    NI = 16
    dmaq = list(dmaq)
    def addhead(gaps, k, items): gaps[k] = order_gap(items + gaps[k])
    for i in range(NI):
        last = i == NI - 1
        g_, par = divmod(i, 2)
        Sa, Sb = SA[i % 2], SB[i % 2]; San, Sbn = SA[(i + 1) % 2], SB[(i + 1) % 2]
        def smgaps(S, h2, l):
            nonlocal spill
            sm = sm_half(S, h2, l)
            gaps = [list(x) for x in sm[:8]]
            gaps[0] = [gaps[0][0]] + spill + gaps[0][1:]
            spill = sm[8]
            return gaps
        if stamps and i in stamps: o += stamp(stamps[i])
        ms = qk(0, i + 1) if not last else []
        gaps = smgaps(Sa, 1, LA)
        mc = maxchain(Sb, MXB, first=(i == 0))
        for k in range(4): gaps[2 * k + 1].append(mc[4 + k])
        vr_ = [v_read(i, 0, t, j2) for t in range(4) for j2 in range(2)]
        if i == 0:
            he = h_epi(HXB, h_soff(STB, False), hmods)
            st = [x for x in he if is_mem(x)]; he = [x for x in he if not is_mem(x)]
            gaps = merge(gaps, spread(he, 8, 0, 7))
            gaps[4].append(st[0]); gaps[7].append(st[1])
            gaps[4].remove(st[0]); gaps[5].append(st[0])
        for k in range(8): addhead(gaps, k, [vr_[k]])
        if not last:
            w = [WaitLG(f"k{i+1}_7")]
            if par == 0 and g_ <= 6:
                w = [WaitVM(f"K{g_+1}", f"V{g_+1}")] + w + [I("s_barrier")]
                if g_ + 4 <= 7: dmaq += groups(k_dma(g_ + 4))
                if g_ + 3 <= 7: dmaq += groups(v_dma(g_ + 3))
            gaps[3] = w + gaps[3]
            o += weave(ms, gaps)
        else:
            for k in range(8): o += gaps[k]
        if i == 0: o += init_tile(Sb, MXB, NEGB, LB)
        ms = qk(1, i + 1) if not last else []
        gaps = smgaps(Sb, 0, LB)
        mca = maxchain(San, MXA) if not last else None
        if not last:
            for k, gp in enumerate((3, 5, 6, 7)): gaps[gp].append(mca[k])
        vr_ = [v_read(i, 1, t, j2) for t in range(4) for j2 in range(2)]
        for k in range(8): addhead(gaps, k, [vr_[k]])
        gaps[7] = [WaitLG(f"v{i}_0")] + gaps[7]
        if not last: o += weave(ms, gaps)
        else:
            for k in range(8): o += gaps[k]
        ms = pv(0, i)
        gaps = smgaps(Sb, 1, LB)
        if not last:
            for k in range(4): gaps[2 * k + 1].append(mca[4 + k])
        if i + 2 < NI:
            for k in range(4): addhead(gaps, 2 * k, [k_read(i + 2, k)])
        for k in (1, 3, 5, 7):
            if dmaq:
                g = dmaq.pop(0)
                addhead(gaps, k - 1, g[:-1]); addhead(gaps, k, g[-1:])
        if last:
            pre_a, body_a = o_epi(0, omods)
            gaps = merge(gaps, spread(pre_a, 8, 1, 8))
        gaps[3] = [WaitLG(f"v{i}_1")] + gaps[3]
        o += weave(ms, gaps)
        ms = pv(1, i)
        if not last:
            gaps = smgaps(San, 0, LA)
            mc = maxchain(Sbn, MXB)
            for k in range(4): gaps[2 * k + 1].append(mc[k])
            if i + 2 < NI:
                for k in range(4): addhead(gaps, 2 * k, [k_read(i + 2, 4 + k)])
            for k in (1, 3, 5, 7):
                if dmaq:
                    g = dmaq.pop(0)
                    addhead(gaps, k - 1, g[:-1]); addhead(gaps, k, g[-1:])
            if i + 2 < NI: gaps[7] = [WaitLG(f"k{i+2}_3")] + gaps[7]
            o += weave(ms, gaps)
        else:
            body, rest = pack(ms, spill + body_a)
            o += body + rest
            pre_b, body_b = o_epi(1, omods)
            o += pre_b[:3] + [I("s_nop 0")] + pre_b[3:] + body_b
    assert not dmaq
    return o

def rare_subs(name="attn"):
    subs = []
    for k in range(2):
        subs.append((f"{name}_rare_a{k}", rare(f"{name}_rare_a{k}", SA[k], MXA, NEGA, LA, 0)))
        subs.append((f"{name}_rare_b{k}", rare(f"{name}_rare_b{k}", SB[k], MXB, NEGB, LB, 64)))
    return subs

def write_stamps(n, slot):
    o = []; A = lambda t, **k: o.append(I(t, **k))
    A(f"s_lshl_b32 s{ST}, s2, 6"); A(f"s_add_u32 s{ST}, s{ST}, {STAMP_OFF + slot*256*64}")
    A("s_cmp_lg_u32 s3, 0"); A(f"s_cbranch_scc1 stamps_done{slot}")
    A(f"v_mov_b32 v1, 0")
    for k in range(n):
        A(f"v_mov_b32 v2, s{90+k if k < 7 else 69}")
        A(f"v_mov_b32 v3, s{70+k if k else 97}")
        A(f"buffer_store_dword v2, v1, {srd(WS)}, s{ST} offen offset:{4*k}")
        A(f"buffer_store_dword v3, v1, {srd(WS)}, s{ST} offen offset:{32+4*k}")
        A("s_waitcnt vmcnt(0)")
    o.append(Label(f"stamps_done{slot}"))
    return o

def k2(name="attn_kernel", prof=False, pace=2.5):
    o = [I("s_cmp_ge_u32 s2, 256"), I(f"s_cbranch_scc1 {name}_end")]
    o += load_ptrs()
    if prof: o += stamp(0)
    o += decode_ids()
    o += lane_consts()
    o.append(WaitLG())
    o += srds()
    bl, bi = bias_init()
    o += bl
    o += [I(f"s_lshl_b32 s{SXA}, s{STA}, 15"), I(f"s_lshl_b32 s{SXB}, s{STB}, 15")]
    if XN_OFF: o += [I(f"s_add_u32 s{SXA}, s{SXA}, {XN_OFF}"), I(f"s_add_u32 s{SXB}, s{SXB}, {XN_OFF}")]
    o += flat(xn_ops(0)) + flat(w_ops(0)) + flat(xn_ops(1)) + flat(xn_ops(2)) + flat(xn_ops(3))
    o.append(I(f"s_mov_b32 s{STH}, {hexf(THRESH)}"))
    o += bi
    o += flat(w_ops(1))
    o += [WaitVM("D0"), I("s_barrier")]
    if prof == 1: o += stamp(1)
    o += a_reads(0) + [WaitLG("a0_2")]
    o += phase_a(pace)
    if prof == 1: o += stamp(2)
    body, spill, dmaq = phase_b_prologue()
    o += body
    if prof == 1: o += stamp(3)
    o += phase_b(spill, dmaq, name=name, stamps={0: 1, 2: 2, 6: 3, 10: 4, 14: 5, 15: 6} if prof == 2 else None)
    if prof == 1: o += stamp(4)
    if prof == 2: o += [I("s_memtime s[98:99]"), I("s_memrealtime s[100:101]"), I("s_waitcnt lgkmcnt(0)"), I("s_mov_b32 s69, s98"), I("s_mov_b32 s77, s100")]
    o += [WaitVM()]
    if prof == 1: o += stamp(5) + write_stamps(6, 1)
    if prof == 2: o += write_stamps(8, 1)
    o += [Label(f"{name}_end"), I("s_endpgm")]
    return o, []
```

```python
from common import *

def ln_body(touch=True, store_mods=""):
    o = []; A = lambda t, **k: o.append(I(t, **k))
    A("v_and_b32 v1, 63, v0")
    A("v_lshrrev_b32 v2, 6, v0")
    A("v_and_b32 v3, 7, v1")
    A("v_lshrrev_b32 v4, 3, v1")
    A("v_lshl_add_u32 v5, v2, 4, v4")
    A("s_lshl_b32 s52, s2, 13")
    A("v_lshlrev_b32 v6, 10, v3")
    A("v_lshl_add_u32 v6, v5, 4, v6")
    A(f"buffer_load_dwordx4 v[8:11], v6, {srd(XS)}, s52 offen", tag="x0")
    A(f"buffer_load_dwordx4 v[12:15], v6, {srd(XS)}, s52 offen offset:128", tag="x1")
    if touch:
        o += touches()
    A("s_lshr_b32 s53, s2, 2"); A("s_lshl_b32 s53, s53, 15")
    A("s_and_b32 s54, s2, 3"); A("s_lshl_b32 s54, s54, 7")
    A("s_add_u32 s53, s53, s54")
    if XN_OFF: A(f"s_add_u32 s53, s53, {XN_OFF}")
    A("v_lshlrev_b32 v7, 4, v3")
    A("v_lshl_add_u32 v7, v5, 9, v7")
    A("v_add_u32 v50, 0x1000, v7")
    A("v_lshlrev_b32 v51, 4, v3")
    A("v_lshl_add_u32 v52, v2, 2, v51")
    o.append(WaitVM("x1"))
    for i in range(8):
        A(f"v_lshlrev_b32 v{16+2*i}, 16, v{8+i}")
        A(f"v_and_b32 v{17+2*i}, 0xffff0000, v{8+i}")
    def reduce(src, ldsoff):
        A("s_nop 1")
        A("v_add_f32_dpp v33, v32, v32 row_ror:8 row_mask:0xf bank_mask:0xf")
        A("v_mov_b32 v34, v33")
        A("s_nop 1")
        A("v_permlane16_swap_b32 v33, v34")
        A("v_add_f32 v33, v33, v34")
        A("v_mov_b32 v34, v33")
        A("s_nop 1")
        A("v_permlane32_swap_b32 v33, v34")
        A("v_add_f32 v33, v33, v34")
        A(f"ds_write_b32 v52, v33 offset:{ldsoff}", tag=f"rw{ldsoff}", wr=(f"ln{ldsoff}", 0))
        o.append(WaitLG())
        A("s_barrier")
        A(f"ds_read_b128 v[36:39], v51 offset:{ldsoff}", tag=f"rr{ldsoff}", rd=(f"ln{ldsoff}", 0))
        o.append(WaitLG())
        A("v_add_f32 v36, v36, v37"); A("v_add_f32 v38, v38, v39"); A("v_add_f32 v36, v36, v38")
    for i in range(8): A(f"v_add_f32 v{40+i}, v{16+2*i}, v{17+2*i}")
    for i in range(4): A(f"v_add_f32 v{40+i}, v{40+2*i}, v{41+2*i}")
    A("v_add_f32 v40, v40, v41"); A("v_add_f32 v42, v42, v43"); A("v_add_f32 v32, v40, v42")
    reduce(32, 0)
    A(f"v_mul_f32 v35, {hexf(-1.0/512)}, v36")
    for i in range(16): A(f"v_add_f32 v{16+i}, v{16+i}, v35")
    for i in range(4):
        A(f"v_mul_f32 v{40+i}, v{16+4*i}, v{16+4*i}")
        for j in range(1, 4): A(f"v_fmac_f32 v{40+i}, v{16+4*i+j}, v{16+4*i+j}")
    A("v_add_f32 v40, v40, v41"); A("v_add_f32 v42, v42, v43"); A("v_add_f32 v32, v40, v42")
    reduce(32, 128)
    A(f"v_mov_b32 v37, {hexf(1e-5)}")
    A(f"v_fmac_f32 v37, {hexf(1.0/512)}, v36")
    A("v_rsq_f32 v37, v37")
    A("s_nop 0")
    A(f"v_mul_f32 v37, {hexf(CSC)}, v37")
    for i in range(16): A(f"v_mul_f32 v{16+i}, v{16+i}, v37")
    for i in range(8): A(f"v_cvt_pk_bf16_f32 v{8+i}, v{16+2*i}, v{17+2*i}")
    A(f"buffer_store_dwordx4 v[8:11], v7, {srd(WS)}, s53 offen{store_mods}", tag="xs0")
    A(f"buffer_store_dwordx4 v[12:15], v50, {srd(WS)}, s53 offen{store_mods}", tag="xs1")
    return o

def touches():
    o = []; A = lambda t, **k: o.append(I(t, **k))
    A("s_lshr_b32 s55, s2, 3"); A("s_lshl_b32 s55, s55, 8")
    A("v_add_u32 v53, s55, v0")
    A("s_and_b32 s56, s2, 3")
    A("v_lshrrev_b32 v54, 4, v53")
    A("v_and_b32 v55, 15, v53")
    A("s_lshl_b32 s57, s56, 11")
    A("v_lshlrev_b32 v56, 13, v54"); A("v_lshl_add_u32 v56, v55, 7, v56")
    A(f"buffer_load_dword v60, v56, {srd(WQ)}, s57 offen", tag="t0")
    A("s_movk_i32 s58, 2752")
    A("v_mul_lo_u32 v57, v54, s58")
    A("s_lshl_b32 s58, s56, 9")
    A("s_lshl_b32 s59, s56, 8"); A("s_add_u32 s59, s59, 2048")
    A("v_lshlrev_b32 v58, 6, v55"); A("v_add_u32 v58, s58, v58")
    A("v_and_b32 v59, 3, v55"); A("v_lshlrev_b32 v59, 6, v59"); A("v_add_u32 v59, s59, v59")
    A("v_cmp_gt_u32 vcc, 8, v55")
    A("s_nop 1")
    A("v_cndmask_b32 v58, v59, v58, vcc")
    A("v_add_u32 v57, v57, v58")
    A(f"buffer_load_dword v61, v57, {srd(W1)}, 0 offen", tag="t1")
    A("v_lshrrev_b32 v56, 10, v53"); A("v_lshlrev_b32 v56, 19, v56")
    A("v_and_b32 v57, 1023, v53"); A("v_lshl_add_u32 v56, v57, 7, v56")
    A("s_lshl_b32 s57, s56, 22"); A(f"s_add_u32 s57, s57, {1536*256}")
    A(f"buffer_load_dword v62, v56, {srd(KS)}, s57 offen", tag="t2")
    A(f"buffer_load_dword v63, v56, {srd(VS)}, s57 offen", tag="t3")
    return o

def k1(name="ln_kernel", touch=True):
    o = [I("s_cmp_ge_u32 s2, 256"), I(f"s_cbranch_scc1 {name}_end")]
    o += load_ptrs()
    o.append(WaitLG())
    o += make_srd(XS, P_X, 2048 * 1024)
    o += make_srd(WS, P_WS, WS_BYTES)
    if touch:
        o += make_srd(WQ, P_WQ, 512 * 8192) + make_srd(W1, P_W1, 512 * 2752)
        o += make_srd(KS, P_K, 1 << 24) + make_srd(VS, P_V, 1 << 24)
    o += ln_body(touch)
    o += [WaitVM(), Label(f"{name}_end"), I("s_endpgm")]
    return o
```

```python
from common import *
from k_attn import mfma, is_scalar, is_mem, order_gap, slots, flat, write_stamps, TRA, TRW, LANE16, SWL4, SWL2, ST, ST2, T0, T1, T2, LDS_W1
import math

SHG, SR, SC_, STQ = 4, 5, 6, 7
SO, SWO, SH, SW2, SPART = 52, 54, 53, 55, 56
ACC = lambda t: 16 * t
FACC = 64
AS4 = lambda p, t: 80 + 16 * p + 4 * t
AS3 = lambda p: 112 + 4 * p
TRA2 = 128
VWO = 132
VW2 = 136
VXO = 137
XR = 140
PR = 148
TMP = 180
IC2 = 1.0 / (CSC * CSC)

def decode_out():
    o = []; A = lambda t, **k: o.append(I(t, **k))
    A("v_lshrrev_b32 v1, 6, v0")
    A("s_and_b32 s52, s2, 7")
    A("v_readfirstlane_b32 s3, v1")
    A("s_lshr_b32 s53, s2, 3")
    A(f"s_and_b32 s{SHG}, s52, 3")
    A("s_lshr_b32 s54, s52, 2"); A("s_lshl_b32 s54, s54, 3")
    A("s_lshr_b32 s55, s53, 2"); A(f"s_add_u32 s{SR}, s54, s55")
    A(f"s_and_b32 s{SC_}, s53, 3")
    A(f"s_lshl_b32 s54, s{SR}, 2"); A(f"s_add_u32 s{STQ}, s54, s3")
    A(f"s_lshl_b32 s{SWL4}, s3, 12"); A(f"s_lshl_b32 s{SWL2}, s3, 11")
    return o

def lane_consts_out(base=True):
    o = []; A = lambda t, **k: o.append(I(t, **k))
    L, HH, DH, R4, C4, X, Y, RR, SL = [TMP + i for i in range(9)]
    if base:
        A(f"v_and_b32 v{L}, 63, v0")
        A(f"v_lshlrev_b32 v{LANE16}, 4, v{L}")
    else:
        A(f"v_lshrrev_b32 v{L}, 4, v{LANE16}")
    A(f"v_lshrrev_b32 v{HH}, 5, v{L}")
    A(f"v_and_b32 v{C4}, 3, v{L}")
    if base:
        A(f"v_bfe_u32 v{DH}, v{L}, 4, 1"); A(f"v_bfe_u32 v{R4}, v{L}, 2, 2")
        A(f"v_and_b32 v{X}, 1, v{C4}"); A(f"v_lshlrev_b32 v{X}, 4, v{X}")
        A(f"v_lshl_add_u32 v{X}, v{DH}, 5, v{X}")
        A(f"v_lshrrev_b32 v{Y}, 1, v{C4}"); A(f"v_lshl_add_u32 v{X}, v{Y}, 3, v{X}")
        A(f"v_lshl_add_u32 v{Y}, v{HH}, 3, v{R4}")
        A(f"v_lshl_add_u32 v{TRW}, v{Y}, 6, v{X}")
        A(f"v_add_u32 v{TRW}, {LDS_W1}, v{TRW}")
        A(f"v_lshl_add_u32 v{TRA}, v{Y}, 8, v{X}")
        A(f"v_lshl_add_u32 v{TRA}, v{R4}, 6, v{TRA}")
        for t in range(1, 4): A(f"v_xor_b32 v{TRA+t}, {64*t}, v{TRA}")
    for t in range(4): A(f"v_add_u32 v{TRA2+t}, 0x10000, v{TRA+t}")
    A(f"v_lshrrev_b32 v{RR}, 4, v{L}"); A(f"v_and_b32 v{SL}, 15, v{L}")
    A(f"v_lshlrev_b32 v{X}, 2, v{RR}"); A(f"v_xor_b32 v{X}, v{X}, v{SL}"); A(f"v_lshlrev_b32 v{X}, 4, v{X}")
    A(f"v_lshl_add_u32 v{VWO}, v{RR}, 10, v{X}")
    A(f"s_lshl_b32 s{ST}, s3, 14")
    A(f"v_add_u32 v{VWO}, s{ST}, v{VWO}")
    for j in range(1, 4): A(f"v_add_u32 v{VWO+j}, {j*(4096-1024)}, v{VWO}")
    A(f"v_lshrrev_b32 v{X}, 2, v{L}"); A(f"v_lshlrev_b32 v{X}, 10, v{X}")
    A(f"v_lshl_add_u32 v{X}, v{C4}, 4, v{X}"); A(f"v_add_u32 v{VW2}, s{ST}, v{X}")
    A(f"v_and_b32 v{X}, 31, v{L}"); A(f"v_lshlrev_b32 v{X}, 10, v{X}")
    A(f"v_lshl_add_u32 v{VXO}, v{HH}, 4, v{X}")
    A(f"v_lshlrev_b32 v{T2}, 4, v{HH}")
    return o

def srds_p4():
    o = []; A = lambda t, **k: o.append(I(t, **k))
    A(f"s_lshl_b32 s{ST}, s{SHG}, 20"); A(f"s_lshl_b32 s{ST2}, s{SC_}, 8"); A(f"s_add_u32 s{ST}, s{ST}, s{ST2}")
    o += make_srd(WO, P_WO, 4096 * 1024, off_sgpr=ST, size_minus_off=True)
    return o
def srds_p3():
    o = []; A = lambda t, **k: o.append(I(t, **k))
    A(f"s_lshl_b32 s{ST}, s{SC_}, 8"); A(f"s_lshl_b32 s{ST2}, s{SHG}, 6"); A(f"s_add_u32 s{ST}, s{ST}, s{ST2}")
    o += make_srd(W2, P_W2, 1376 * 1024, off_sgpr=ST, size_minus_off=True)
    o += make_srd(B2, P_B2, 1024, off_sgpr=ST, size_minus_off=True)
    A(f"s_lshl_b32 s{ST2}, s{STQ}, 15"); A(f"s_add_u32 s{ST}, s{ST}, s{ST2}")
    o += make_srd(XS, P_X, 2048 * 1024, off_sgpr=ST, size_minus_off=True)
    o += make_srd(OUT, P_OUT, 2048 * 1024, off_sgpr=ST, size_minus_off=True)
    return o

def wo_ops(ch):
    slot = ch % 8
    g = []
    for j in range(4):
        pre = [I(f"s_add_u32 m0, s{SWL4}, {slot*16384}"), I(f"s_mov_b32 s{SWO}, {ch*65536}")] if j == 0 else []
        g.append(pre + [I(f"buffer_load_dwordx4 v{VWO+j}, {srd(WO)}, s{SWO} offen offset:{1024*j} lds", tag=f"WO{ch}", wr=(f"P{slot}", ch))])
    return g
def o_ops(s, mods=""):
    pre = [I(f"s_add_u32 s{SO}, s{SO}, 4096")] if (s % 4 == 0 and s > 0) else []
    return [pre + [I(f"buffer_load_dwordx4 {ar(4*s)}, v{LANE16}, {srd(WS)}, s{SO} offen offset:{1024*(s%4)}{mods}", tag=f"o{s}")]]
def p4_reads(s):
    ch, sp = divmod(s, 4); slot = ch % 8; p = s % 2
    base = TRA if slot < 4 else TRA2
    return [I(f"ds_read_b64_tr_b16 {vr(AS4(p, t) + 2*j2, 2)}, v{base+t} offset:{(slot % 4)*16384 + sp*4096 + j2*1024}", tag=f"p{s}_{t}", rd=(f"P{slot}", ch))
            for t in range(4) for j2 in range(2)]
def p4_setup():
    return [I(f"s_lshl_b32 s{SO}, s{STQ}, 18"), I(f"s_lshl_b32 s{ST}, s{SHG}, 16"), I(f"s_add_u32 s{SO}, s{SO}, s{ST}"),
            I(f"s_add_u32 s{SO}, s{SO}, {O_OFF}")]

def p4(pace=1.5, valu=None, omods=""):
    o = []
    NS = 64
    up = flat(o_ops(0, omods)) + flat(wo_ops(0)) + flat(o_ops(1, omods)) + flat(wo_ops(1)) + flat(o_ops(2, omods)) + flat(o_ops(3, omods))
    o += up
    o += [WaitVM("WO1"), I("s_barrier")]
    o += p4_reads(0) + [WaitLG("p0_1")]
    def M(g): return (8 * g + 6) * 4 + 3
    ops = []
    for g in range(1, 8):
        e = M(g - 3) + 1 if g >= 4 else 0
        ops += [(M(g - 1), x, e) for x in wo_ops(2 * g) + wo_ops(2 * g + 1)]
    for s in range(4, 64): ops += [(4 * s - 1, x, 0) for x in o_ops(s, omods)]
    ops.sort(key=lambda z: z[0])
    ops = [(x, e) for _, x, e in ops]
    heads = [[] for _ in range(NS * 4 + 64)]
    pos = 0.0
    for g, e in ops:
        pos = max(pos, e); heads[int(pos)] += g; pos += pace
    assert int(pos - pace) < (NS - 2) * 4, pos
    valu = list(valu or [])
    for s in range(NS):
        p = s % 2
        ms = [mfma(vr(ACC(t), 16), vr(AS4(p, t)), ar(4 * s), "0" if s == 0 else vr(ACC(t), 16)) for t in range(4)]
        rd = p4_reads(s + 1) if s + 1 < NS else []
        gaps = [rd[0:3], rd[3:6], rd[6:8], []]
        for k in range(4):
            pre = []
            if k == 1: pre.append(WaitLG(f"p{s}_3"))
            if k == 3 and s + 1 < NS:
                tg = [f"o{s+1}"]
                bar = s % 8 == 6 and s // 8 < 7
                if bar: tg.append(f"WO{2*(s//8)+3}")
                pre += [WaitVM(*tg), WaitLG(f"p{s+1}_1")]
                if bar: pre.append(I("s_barrier"))
            h = heads[s * 4 + k]
            sc = [x for x in h if is_scalar(x)]; me = [x for x in h if not is_scalar(x)]
            gaps[k] = pre + sc + gaps[k] + me
            c = sum(slots(x) for x in gaps[k]) - 1
            while valu and c + slots(valu[0]) <= 6 and s >= 1:
                c += slots(valu[0]); gaps[k].append(valu.pop(0))
        o += weave(ms, gaps)
    o += valu
    return o

def part_store(tiles, mods=""):
    o = []; A = lambda t, **k: o.append(I(t, **k))
    A(f"s_lshl_b32 s{SPART}, s{SR}, 2"); A(f"s_add_u32 s{SPART}, s{SPART}, s{SC_}"); A(f"s_lshl_b32 s{SPART}, s{SPART}, 17")
    A(f"s_add_u32 s{SPART}, s{SPART}, {PART_OFF}"); A(f"s_add_u32 s{SPART}, s{SPART}, s{SWL2}")
    A(f"s_lshl_b32 s{ST}, s{SHG}, 13"); A(f"s_add_u32 s{ST2}, s{SPART}, s{ST}")
    for t in range(4):
        if t: A(f"s_add_u32 s{ST2}, s{ST2}, {1 << 15}")
        for half in range(2):
            b = ACC(t) + 8 * half; d = TMP + 8 * (t % 2) + 4 * half
            for m in range(4): A(f"v_cvt_pk_bf16_f32 v{d+m}, v{b+2*m}, v{b+2*m+1}")
            A(f"buffer_store_dwordx4 {vr(d)}, v{LANE16}, {srd(WS)}, s{ST2} offen offset:{1024*half}{mods}", tag="pst")
    return o

LDS_W2 = LDS_W1
def w2_ops(q):
    return [[I(f"s_lshl_b32 s{ST}, s3, 10"), I(f"s_add_u32 m0, s{ST}, {LDS_W2 + q*4096}"), I(f"s_mov_b32 s{SW2}, {q*65536}"),
             I(f"buffer_load_dwordx4 v{VW2}, {srd(W2)}, s{SW2} offen lds", tag=f"W2{q}", wr=(f"Z{q}", 0))]]
NH = 64
def h_ops(s, mods=""):
    pre = [I(f"s_add_u32 s{SH}, s{SH}, 4096")] if (s % 4 == 0 and s > 0) else []
    return [pre + [I(f"buffer_load_dwordx4 {ar(4*(s % NH))}, v{LANE16}, {srd(WS)}, s{SH} offen offset:{1024*(s%4)}{mods}", tag=f"h{s}")]]
def p3_reads(s):
    q = s // 4
    off = s * 1024
    base = TRW
    if off >= 65536: base = TRA2; off -= 65536
    return [I(f"ds_read_b64_tr_b16 {vr(AS3(s % 4) + 2*j2, 2)}, v{base} offset:{off + j2*256}", tag=f"w{s}", rd=(f"Z{q}", 0)) for j2 in range(2)]

def b2_init():
    ld = [I(f"buffer_load_dwordx4 {vr(TMP)}, v{T2}, {srd(B2)}, 0 offen", tag="b2"),
          I(f"buffer_load_dwordx4 {vr(TMP+4)}, v{T2}, {srd(B2)}, 0 offen offset:32", tag="b2")]
    o = [WaitVM("b2"), I(f"s_mov_b32 s{ST}, {hexf(CSC*CSC)}")]
    for m in range(8):
        o.append(I(f"v_lshlrev_b32 v{FACC+2*m}, 16, v{TMP+m}")); o.append(I(f"v_and_b32 v{FACC+2*m+1}, 0xffff0000, v{TMP+m}"))
    for r in range(16): o.append(I(f"v_mul_f32 v{FACC+r}, s{ST}, v{FACC+r}"))
    return ld, o

def p3(hmods=""):
    o = []
    NS = 86
    o += [I(f"s_mul_i32 s{SH}, s{STQ}, {86*1024}"), I(f"s_add_u32 s{SH}, s{SH}, {H_OFF}"), I(f"v_add_u32 v{TRA2}, 0x10000, v{TRW}")]
    ld, bi = b2_init()
    o += ld
    o += flat(h_ops(0, hmods)) + flat(w2_ops(0)) + flat(w2_ops(1))
    for s in range(1, 8): o += flat(h_ops(s, hmods))
    o += flat(w2_ops(2)) + flat(w2_ops(3))
    o += bi
    o += [WaitVM("W21"), I("s_barrier")]
    o += p3_reads(0) + p3_reads(1)
    ops = []
    for g in range(1, 11):
        for s in range(8 * g, min(8 * g + 8, NS)): ops += h_ops(s, hmods)
        for q in (2 * g + 2, 2 * g + 3):
            if q <= 21: ops += w2_ops(q)
    it = iter(ops); ops = list(ops); pi = 0
    for s in range(NS):
        m = mfma(vr(FACC, 16), vr(AS3(s % 4)), ar(4 * (s % NH)), vr(FACC, 16))
        pre = [WaitVM(f"h{s}"), WaitLG(f"w{s}")]
        gap = []
        if s % 8 == 5 and 2 * (s // 8) + 2 <= 21:
            q = min(2 * (s // 8) + 3, 21)
            gap += [WaitVM(f"W2{q}"), I("s_barrier")]
        if s + 2 < NS: gap += p3_reads(s + 2)
        n = 1 if s % 4 else 2
        for _ in range(n):
            if pi < len(ops): gap += ops[pi]; pi += 1
        o += pre + [m] + gap
    assert pi == len(ops)
    return o

def gate_valu():
    o = []; A = lambda t: o.append(I(t))
    A(f"s_mov_b32 s{ST}, {hexf(-IC2 * math.log2(math.e))}"); A(f"s_mov_b32 s{ST2}, {hexf(IC2)}")
    E = TMP + 16
    for r0 in range(0, 16, 4):
        R = range(r0, r0 + 4)
        for r in R: A(f"v_mul_f32 v{E+r-r0}, s{ST}, v{FACC+r}")
        for r in R: A(f"v_exp_f32 v{E+r-r0}, v{E+r-r0}")
        for r in R: A(f"v_mul_f32 v{FACC+r}, s{ST2}, v{FACC+r}")
        for r in R: A(f"v_add_f32 v{E+r-r0}, 1.0, v{E+r-r0}")
        for r in R: A(f"v_rcp_f32 v{E+r-r0}, v{E+r-r0}")
        A("s_nop 0")
        for r in R: A(f"v_mul_f32 v{FACC+r}, v{FACC+r}, v{E+r-r0}")
    return o

def x_load():
    return [I(f"buffer_load_dwordx4 {vr(XR)}, v{VXO}, {srd(XS)}, 0 offen", tag="xr"),
            I(f"buffer_load_dwordx4 {vr(XR+4)}, v{VXO}, {srd(XS)}, 0 offen offset:32", tag="xr")]
def part_loads(mods=""):
    o = []; A = lambda t, **k: o.append(I(t, **k))
    A(f"s_lshl_b32 s{SPART}, s{SR}, 2"); A(f"s_add_u32 s{SPART}, s{SPART}, s{SC_}"); A(f"s_lshl_b32 s{SPART}, s{SPART}, 17")
    A(f"s_add_u32 s{SPART}, s{SPART}, {PART_OFF}"); A(f"s_add_u32 s{SPART}, s{SPART}, s{SWL2}")
    A(f"s_lshl_b32 s{ST}, s{SHG}, 15"); A(f"s_add_u32 s{ST2}, s{SPART}, s{ST}")
    for src in range(4):
        if src: A(f"s_add_u32 s{ST2}, s{ST2}, {1 << 13}")
        for half in range(2):
            A(f"buffer_load_dwordx4 {vr(PR + 8*src + 4*half)}, v{LANE16}, {srd(WS)}, s{ST2} offen offset:{1024*half}{mods}", tag="pld")
    return o
def final():
    o = []; A = lambda t, **k: o.append(I(t, **k))
    o.append(WaitVM("xr", "pld"))
    S = TMP
    for half in range(2):
        for m in range(4):
            k = 4 * half + m
            lo, hi = S, S + 1
            A(f"v_lshlrev_b32 v{lo}, 16, v{PR+k}"); A(f"v_and_b32 v{hi}, 0xffff0000, v{PR+k}")
            for src in range(1, 4):
                A(f"v_lshlrev_b32 v{S+2}, 16, v{PR+8*src+k}"); A(f"v_and_b32 v{S+3}, 0xffff0000, v{PR+8*src+k}")
                A(f"v_add_f32 v{lo}, v{lo}, v{S+2}"); A(f"v_add_f32 v{hi}, v{hi}, v{S+3}")
            A(f"v_lshlrev_b32 v{S+2}, 16, v{XR+k}"); A(f"v_and_b32 v{S+3}, 0xffff0000, v{XR+k}")
            A(f"v_fmac_f32 v{S+2}, v{lo}, v{FACC+2*k}"); A(f"v_fmac_f32 v{S+3}, v{hi}, v{FACC+2*k+1}")
            A(f"v_cvt_pk_bf16_f32 v{XR+k}, v{S+2}, v{S+3}")
        A(f"buffer_store_dwordx4 {vr(XR+4*half)}, v{VXO}, {srd(OUT)}, 0 offen offset:{32*half}", tag="out")
    return o

def k3(name="oproj_kernel", prof=False, pace=1.5):
    o = [I("s_cmp_ge_u32 s2, 256"), I(f"s_cbranch_scc1 {name}_end")]
    o += load_ptrs()
    if prof: o += stamp(0)
    o += decode_out() + lane_consts_out()
    o.append(WaitLG())
    o += make_srd(WS, P_WS, WS_BYTES) + srds_p4() + p4_setup()
    if prof: o += stamp(1)
    o += p4(pace)
    if prof: o += stamp(2)
    o += [I("s_nop 15")] + part_store("all")
    o += [WaitVM()]
    if prof: o += stamp(3) + write_stamps(4, 2)
    o += [Label(f"{name}_end"), I("s_endpgm")]
    return o

def k4(name="final_kernel", prof=False):
    o = [I("s_cmp_ge_u32 s2, 256"), I(f"s_cbranch_scc1 {name}_end")]
    o += load_ptrs()
    if prof: o += stamp(0)
    o += decode_out() + lane_consts_out()
    o.append(WaitLG())
    o += make_srd(WS, P_WS, WS_BYTES) + srds_p3()
    if prof: o += stamp(1)
    o += p3()
    if prof: o += stamp(2)
    o += x_load() + part_loads() + [I("s_nop 7")] + gate_valu() + final()
    o += [WaitVM()]
    if prof: o += stamp(3) + write_stamps(4, 3)
    o += [Label(f"{name}_end"), I("s_endpgm")]
    return o
```

```python
import sys
from common import *
import k_ln, k_attn, k_out
prof = 1 if "--prof" in sys.argv else 0
nemp = int([a[8:] for a in sys.argv if a.startswith("--empty=")][0]) if any(a.startswith("--empty=") for a in sys.argv) else 0
hdr = open("recurrent_scan__sliding_block_cached__dense_activation_squared_relu__prompt.s.ref").read().split("; Override")[0]
s = hdr
for i in range(nemp): s += "; @launch kernel=empty_kernel grid=(256,1,1) block=(256,1,1) lds=0\n"
s += "; @launch kernel=ln_kernel grid=(256,1,1) block=(256,1,1) lds=256\n"
s += "; @launch kernel=attn_kernel grid=(256,1,1) block=(256,1,1) lds=163840\n"
s += "; @launch kernel=oproj_kernel grid=(256,1,1) block=(256,1,1) lds=131072\n"
s += "; @launch kernel=final_kernel grid=(256,1,1) block=(256,1,1) lds=163840\n"
s += '.amdgcn_target "amdgcn-amd-amdhsa--gfx950"\n.text\n'
errs = []
t, e, _ = kernel_text("ln_kernel", k_ln.k1()); s += t; errs += e
main, extra = k_attn.k2(prof=prof)
t, e, fin = kernel_text("attn_kernel", main, extra); s += t; errs += e
t, e, _ = kernel_text("oproj_kernel", k_out.k3(prof=prof)); s += t; errs += e
t, e, _ = kernel_text("final_kernel", k_out.k4(prof=prof)); s += t; errs += e
if nemp:
    t, e, _ = kernel_text("empty_kernel", [I("s_endpgm")]); s += t
s += '.section .rodata,"a"\n' + desc("ln_kernel", 64, 96, 64) + desc("attn_kernel", 512, 102, 256) + desc("oproj_kernel", 512, 102, 256) + desc("final_kernel", 512, 102, 256)
if nemp: s += desc("empty_kernel", 8, 16, 8)
for x in errs: print("ERR", x)
open(sys.argv[1], "w").write(s)
print("errors:", len(errs), "bytes:", len(s))
```

```python
from common import *

QA = lambda t: 16 * t
QB = lambda t: 64 + 16 * t
HXA, HXB, HYA = 128, 144, 160
ASET = lambda p, f: 176 + 24 * p + 4 * f
SA = [176, 128]; SB = [192, 144]; NEGA = 160; NEGB = 208
TRA = 224; TRW = 228; VWQ = 229; VW1X = 233; VW1Y = 234; LANE16 = 235
KRD = 236; VK = 244; VV = 248; LA = 249; LB = 250; MXA = 251; MXB = 252; T0, T1, T2 = 253, 254, 255
XN = lambda s, tile: 8 * s + 4 * tile
QF = lambda tile, s: 32 * tile + 4 * s
KF = lambda s: 64 + 4 * s
VF = lambda ks, t: 96 + 4 * (4 * ks + t)
SW, SHEAD, SRT, STA, STB = 3, 4, 5, 6, 7
SXA, SXB, SWQ, SW1, SKV, SWL4, SWL2, ST, SRET, STH, ST2 = 52, 53, 54, 55, 56, 57, 58, 59, 60, 62, 63
LDS_W1 = 65536; LDS_K = 98304
THRESH = 10.0

MF = "v_mfma_f32_32x32x16_bf16"
def mfma(d, a, b, c):
    return I(f"{MF} {d}, {a}, {b}, {c}")

def is_mem(x): return isinstance(x, I) and info(x.text).kind in ("ds", "vmem")
def is_scalar(x): return isinstance(x, (WaitVM, WaitLG)) or (isinstance(x, I) and info(x.text).kind == "salu")
def slots(x):
    if isinstance(x, (WaitVM, WaitLG)): return 1
    if not isinstance(x, I): return 0
    f = info(x.text)
    if f.kind == "mfma" or f.kind == "vmem" or (f.kind == "valu" and f.trans): return 2
    return f.states

def order_gap(items):
    sc = [x for x in items if is_scalar(x)]
    me = [x for x in items if is_mem(x)]
    va = [x for x in items if not is_scalar(x) and not is_mem(x)]
    w = [x for x in sc if isinstance(x, (WaitVM, WaitLG))]
    nw = [x for x in sc if not isinstance(x, (WaitVM, WaitLG))]
    return w + nw + me + va

def pack(mfmas, fillers, need=None, earliest=None, heads=None, budget=6):
    need = need or {}; earliest = earliest or {}; heads = heads or {}
    out = []; p = 0; defer = []
    for k, m in enumerate(mfmas):
        while p < need.get(k, 0):
            if is_mem(fillers[p]): defer.append(fillers[p])
            else: out.append(fillers[p])
            p += 1
        out.append(m)
        h = order_gap(list(heads.get(k, [])) + defer); defer = []
        out.extend(h)
        c = sum(slots(x) for x in h) - (1 if h and is_scalar(h[0]) else 0)
        while p < len(fillers) and earliest.get(p, 0) <= k:
            x = fillers[p]
            if is_mem(x): defer.append(x); p += 1; continue
            if c + slots(x) > budget: break
            c += slots(x); out.append(x); p += 1
    return out, defer + fillers[p:]

def decode_ids():
    o = []; A = lambda t, **k: o.append(I(t, **k))
    A("v_lshrrev_b32 v1, 6, v0")
    A("s_and_b32 s52, s2, 7")
    A("v_readfirstlane_b32 s3, v1")
    A("s_lshr_b32 s53, s2, 3")
    A("s_and_b32 s54, s52, 3")
    A("s_lshl_b32 s54, s54, 3")
    A("s_and_b32 s55, s53, 7")
    A(f"s_add_u32 s{SHEAD}, s54, s55")
    A("s_lshr_b32 s54, s52, 2")
    A("s_lshl_b32 s54, s54, 2")
    A("s_lshr_b32 s55, s53, 3")
    A(f"s_add_u32 s{SRT}, s54, s55")
    A(f"s_lshl_b32 s54, s{SRT}, 3")
    A("s_lshl_b32 s55, s3, 1")
    A("s_add_u32 s54, s54, s55")
    A(f"s_and_b32 s55, s{SHEAD}, 1")
    A(f"s_add_u32 s{STA}, s54, s55")
    A("s_xor_b32 s55, s55, 1")
    A(f"s_add_u32 s{STB}, s54, s55")
    A(f"s_lshl_b32 s{SWL4}, s3, 12")
    A(f"s_lshl_b32 s{SWL2}, s3, 11")
    return o

def lane_consts():
    o = []; A = lambda t, **k: o.append(I(t, **k))
    L, HH, DH, R4, C4, X, Y, RR, SL = 128, 129, 130, 131, 132, 133, 134, 135, 136
    A(f"v_and_b32 v{L}, 63, v0")
    A(f"v_lshlrev_b32 v{LANE16}, 4, v{L}")
    A(f"v_lshrrev_b32 v{HH}, 5, v{L}")
    A(f"v_bfe_u32 v{DH}, v{L}, 4, 1")
    A(f"v_bfe_u32 v{R4}, v{L}, 2, 2")
    A(f"v_and_b32 v{C4}, 3, v{L}")
    A(f"v_and_b32 v{X}, 1, v{C4}"); A(f"v_lshlrev_b32 v{X}, 4, v{X}")
    A(f"v_lshl_add_u32 v{X}, v{DH}, 5, v{X}")
    A(f"v_lshrrev_b32 v{Y}, 1, v{C4}"); A(f"v_lshl_add_u32 v{X}, v{Y}, 3, v{X}")
    A(f"v_lshl_add_u32 v{Y}, v{HH}, 3, v{R4}")
    A(f"v_lshl_add_u32 v{TRW}, v{Y}, 6, v{X}")
    A(f"v_add_u32 v{TRW}, {LDS_W1}, v{TRW}")
    A(f"v_lshl_add_u32 v{TRA}, v{Y}, 8, v{X}")
    A(f"v_lshl_add_u32 v{TRA}, v{R4}, 6, v{TRA}")
    for t in range(1, 4): A(f"v_xor_b32 v{TRA+t}, {64*t}, v{TRA}")
    A(f"v_lshrrev_b32 v{RR}, 4, v{L}"); A(f"v_and_b32 v{SL}, 15, v{L}")
    A(f"v_lshlrev_b32 v{X}, 2, v{RR}"); A(f"v_xor_b32 v{X}, v{X}, v{SL}")
    A(f"v_lshlrev_b32 v{X}, 4, v{X}")
    A(f"v_lshl_add_u32 v{VV}, v{RR}, 8, v{X}"); A(f"v_add_u32 v{VV}, s{SWL4}, v{VV}")
    A(f"v_lshl_add_u32 v{VWQ}, v{RR}, 13, v{X}")
    A(f"s_lshl_b32 s{ST}, s3, 17")
    A(f"v_add_u32 v{VWQ}, s{ST}, v{VWQ}")
    for j in range(1, 4): A(f"v_add_u32 v{VWQ+j}, {j*(32768-1024)}, v{VWQ}")
    A(f"v_xor_b32 v{X}, v{RR}, v{SL}"); A(f"v_lshlrev_b32 v{X}, 4, v{X}")
    A(f"v_lshl_add_u32 v{VK}, v{RR}, 8, v{X}"); A(f"v_add_u32 v{VK}, s{SWL4}, v{VK}")
    for j in range(1, 4): A(f"v_xor_b32 v{VK+j}, {64*j}, v{VK}")
    A(f"v_lshrrev_b32 v{X}, 2, v{L}")
    A(f"s_lshl_b32 s{ST}, s3, 4"); A(f"v_add_u32 v{X}, s{ST}, v{X}")
    A(f"v_mul_u32_u24 v{X}, 2752, v{X}")
    A(f"v_lshl_add_u32 v{X}, v{C4}, 4, v{X}")
    A(f"s_lshl_b32 s{ST}, s{SHEAD}, 6")
    A(f"v_add_u32 v{VW1X}, s{ST}, v{X}")
    A(f"s_lshr_b32 s{ST}, s{SHEAD}, 1"); A(f"s_lshl_b32 s{ST}, s{ST}, 6"); A(f"s_add_u32 s{ST}, s{ST}, {2048-1024}")
    A(f"s_cmp_ge_u32 s{SHEAD}, 22"); A(f"s_cselect_b32 s{ST2}, 0x40000000, 0"); A(f"s_add_u32 s{ST}, s{ST}, s{ST2}")
    A(f"v_add_u32 v{VW1Y}, s{ST}, v{X}")
    A(f"v_and_b32 v{X}, 0x13, v{L}")
    A(f"v_and_b32 v{Y}, 4, v{L}"); A(f"v_lshl_add_u32 v{X}, v{Y}, 1, v{X}")
    A(f"v_and_b32 v{Y}, 8, v{L}"); A(f"v_lshrrev_b32 v{Y}, 1, v{Y}"); A(f"v_add_u32 v{X}, v{X}, v{Y}")
    A(f"v_and_b32 v{Y}, 15, v{X}"); A(f"v_xor_b32 v{Y}, v{Y}, v{HH}"); A(f"v_lshlrev_b32 v{Y}, 4, v{Y}")
    A(f"v_lshl_add_u32 v{KRD}, v{X}, 8, v{Y}"); A(f"v_add_u32 v{KRD}, {LDS_K}, v{KRD}")
    for s in range(1, 8): A(f"v_xor_b32 v{KRD+s}, {32*s}, v{KRD}")
    A(f"v_lshlrev_b32 v{T2}, 4, v{HH}")
    return o

def srds():
    o = []; A = lambda t, **k: o.append(I(t, **k))
    o += make_srd(WS, P_WS, WS_BYTES)
    A(f"s_lshl_b32 s{ST}, s{SHEAD}, 8")
    o += make_srd(WQ, P_WQ, 512 * 8192, off_sgpr=ST, size_minus_off=True)
    o += make_srd(W1, P_W1, 512 * 2752)
    A(f"s_lshl_b32 s{ST}, s{SHEAD}, 19"); A(f"s_add_u32 s{ST}, s{ST}, {1536*256}")
    o += make_srd(KS, P_K, 131072, off_sgpr=ST)
    o += make_srd(VS, P_V, 131072, off_sgpr=ST)
    o += make_srd(B1, P_B1, 2752)
    return o

XN_MODS = ""
def xn_ops(s):
    c, sp = divmod(s, 4)
    g = []
    for tile, sg in ((0, SXA), (1, SXB)):
        pre = [I(f"s_add_u32 s{sg}, s{sg}, 4096")] if (sp == 0 and c > 0) else []
        g.append(pre + [I(f"buffer_load_dwordx4 {ar(XN(s, tile))}, v{LANE16}, {srd(WS)}, s{sg} offen offset:{1024*sp}{XN_MODS}", tag=f"xn{s}")])
    return g

def w_ops(c):
    slot = c % 4
    g = []
    for j in range(4):
        pre = [I(f"s_add_u32 m0, s{SWL4}, {slot*16384}"), I(f"s_mov_b32 s{SWQ}, {c*64*8192}")] if j == 0 else []
        g.append(pre + [I(f"buffer_load_dwordx4 v{VWQ+j}, {srd(WQ)}, s{SWQ} offen offset:{1024*j} lds", tag=f"D{c}", wr=(f"A{slot}", c))])
    g.append([I(f"s_add_u32 m0, s{SWL2}, {LDS_W1 + slot*8192}"), I(f"s_mov_b32 s{SW1}, {c*64*2752}"),
              I(f"buffer_load_dwordx4 v{VW1X}, {srd(W1)}, s{SW1} offen lds", tag=f"D{c}", wr=(f"W{slot}", c))])
    g.append([I(f"buffer_load_dwordx4 v{VW1Y}, {srd(W1)}, s{SW1} offen offset:1024 lds", tag=f"D{c}", wr=(f"W{slot}", c))])
    return g
def groups(dma):
    return [dma[0:3], [dma[3]], [dma[4]], [dma[5]]]
flat = lambda gs: [x for g in gs for x in g]

def k_dma(p):
    slot = p % 4
    o = [I(f"s_add_u32 m0, s{SWL4}, {LDS_K + slot*16384}"), I(f"s_mov_b32 s{SKV}, {p*16384}")]
    for j in range(4):
        o.append(I(f"buffer_load_dwordx4 v{VK+j}, {srd(KS)}, s{SKV} offen offset:{1024*j} lds", tag=f"K{p}", wr=(f"K{slot}", p)))
    return o
def v_dma(p):
    slot = p % 4
    o = [I(f"s_add_u32 m0, s{SWL4}, {slot*16384}"), I(f"s_mov_b32 s{SKV}, {p*16384}")]
    for j in range(4):
        o.append(I(f"buffer_load_dwordx4 v{VV}, {srd(VS)}, s{SKV} offen offset:{1024*j} lds", tag=f"V{p}", wr=(f"A{slot}", 100 + p)))
    return o

def a_reads(s):
    c, sp = divmod(s, 4); slot = c % 4; p = s % 2
    o = []
    for t in range(4):
        for j2 in range(2):
            o.append(I(f"ds_read_b64_tr_b16 {vr(ASET(p, t) + 2*j2, 2)}, v{TRA+t} offset:{slot*16384 + sp*4096 + j2*1024}",
                       tag=f"a{s}_{t}", rd=(f"A{slot}", c)))
    for y in range(2):
        for j2 in range(2):
            o.append(I(f"ds_read_b64_tr_b16 {vr(ASET(p, 4+y) + 2*j2, 2)}, v{TRW} offset:{slot*8192 + sp*2048 + y*1024 + j2*256}",
                       tag=f"a{s}_{4+y}", rd=(f"W{slot}", c)))
    return o

def k_read(i, s):
    p = i // 2
    return I(f"ds_read_b128 {ar(KF(s))}, v{KRD+s} offset:{(i % 8) * 8192}", tag=f"k{i}_{s}", rd=(f"K{p%4}", p))
def v_read(i, ks, t, j2):
    p = i // 2
    return I(f"ds_read_b64_tr_b16 {ar(VF(ks, t) + 2*j2, 2)}, v{TRA+t} offset:{(i % 8) * 8192 + ks*4096 + j2*1024}",
             tag=f"v{i}_{ks}", rd=(f"A{p%4}", 100 + p))

def bias_init():
    o = []; A = lambda t, **k: o.append(I(t, **k))
    ld = []
    ld.append(I(f"s_lshl_b32 s{ST}, s{SHEAD}, 6"))
    ld.append(I(f"buffer_load_dwordx4 v[176:179], v{T2}, {srd(B1)}, s{ST} offen", tag="b1"))
    ld.append(I(f"buffer_load_dwordx4 v[180:183], v{T2}, {srd(B1)}, s{ST} offen offset:32", tag="b1"))
    ld.append(I(f"s_lshr_b32 s{ST}, s{SHEAD}, 1")); ld.append(I(f"s_lshl_b32 s{ST}, s{ST}, 6")); ld.append(I(f"s_add_u32 s{ST}, s{ST}, 2048"))
    ld.append(I(f"buffer_load_dwordx4 v[184:187], v{T2}, {srd(B1)}, s{ST} offen", tag="b1"))
    ld.append(I(f"buffer_load_dwordx4 v[188:191], v{T2}, {srd(B1)}, s{ST} offen offset:32", tag="b1"))
    o.append(WaitVM("b1"))
    A(f"s_mov_b32 s{ST}, {hexf(CSC)}")
    for (src, dst) in ((176, HXA), (184, HYA)):
        for m in range(8):
            A(f"v_lshlrev_b32 v{dst+2*m}, 16, v{src+m}")
            A(f"v_and_b32 v{dst+2*m+1}, 0xffff0000, v{src+m}")
        for r in range(16): A(f"v_mul_f32 v{dst+r}, s{ST}, v{dst+r}")
    for r in range(16): A(f"v_mov_b32 v{HXB+r}, v{HXA+r}")
    return ld, o

def qconv(acc, tile, t):
    o = []
    for m in range(0, 8, 2):
        o.append(I(f"v_cvt_pk_bf16_f32 v{T0}, v{acc+2*m}, v{acc+2*m+1}"))
        o.append(I(f"v_cvt_pk_bf16_f32 v{T1}, v{acc+2*m+2}, v{acc+2*m+3}"))
        o.append(I(f"v_accvgpr_write_b32 a{QF(tile, 2*t) + m}, v{T0}"))
        o.append(I(f"v_accvgpr_write_b32 a{QF(tile, 2*t) + m + 1}, v{T1}"))
    return o

def h_epi(acc, soff_setup, mods=""):
    o = list(soff_setup)
    for half in range(2):
        b = acc + 8 * half
        for r in range(8): o.append(I(f"v_max_f32 v{b+r}, 0, v{b+r}"))
        for r in range(8): o.append(I(f"v_mul_f32 v{b+r}, v{b+r}, v{b+r}"))
        for m in range(4): o.append(I(f"v_cvt_pk_bf16_f32 v{b+m}, v{b+2*m}, v{b+2*m+1}"))
        o.append(I(f"buffer_store_dwordx4 {vr(b)}, v{LANE16}, {srd(WS)}, s{ST2} offen offset:{1024*half}{mods}", tag="hst"))
    return o
def h_soff(tile_sgpr, y):
    o = [I(f"s_mul_i32 s{ST2}, s{tile_sgpr}, {86*1024}")]
    if not y:
        o += [I(f"s_lshl_b32 s{ST}, s{SHEAD}, 11"), I(f"s_add_u32 s{ST2}, s{ST2}, s{ST}"), I(f"s_add_u32 s{ST2}, s{ST2}, {H_OFF}")]
    else:
        o += [I(f"s_lshr_b32 s{ST}, s{SHEAD}, 1"), I(f"s_lshl_b32 s{ST}, s{ST}, 11"), I(f"s_add_u32 s{ST2}, s{ST2}, s{ST}"),
              I(f"s_add_u32 s{ST2}, s{ST2}, {H_OFF + 32*2048}"),
              I(f"s_cmp_ge_u32 s{SHEAD}, 22"), I(f"s_cselect_b32 s{ST2}, 0x20000000, s{ST2}")]
    return o

def maxchain(S, mx, first=False):
    o = []
    for k in range(8):
        if first and k == 0: o.append(I(f"v_max_f32 v{mx}, v{S}, v{S+1}"))
        else: o.append(I(f"v_max3_f32 v{mx}, v{mx}, v{S+2*k}, v{S+2*k+1}"))
    return o
def init_tile(S, mx, neg, l):
    o = [I(f"v_mov_b32 v{T2}, v{mx}"), I(f"v_mov_b32 v{l}, 0"), I("s_nop 0"), I(f"v_permlane32_swap_b32 v{mx}, v{T2}"),
         I(f"v_max_f32 v{T2}, v{mx}, v{T2}"), I(f"v_mov_b32 v{mx}, 0")]
    for r in range(16): o.append(I(f"v_sub_f32 v{neg+r}, 0, v{T2}"))
    for r in range(16): o.append(I(f"v_sub_f32 v{S+r}, v{S+r}, v{T2}"))
    return o

def sm_half(S, h2, l):
    b = S + 8 * h2
    g = [[] for _ in range(9)]
    for j in range(8): g[j].append(I(f"v_exp_f32 v{b+j}, v{b+j}"))
    for j in range(8): g[j+1].append(I(f"v_add_f32 v{l}, v{l}, v{b+j}"))
    for m in range(4): g[2*m+2].append(I(f"v_cvt_pk_bf16_f32 v{b+m}, v{b+2*m}, v{b+2*m+1}"))
    return g

def rare(name, S, mx, neg, l, obase):
    o = [Label(name), I("s_nop 15"), I(f"v_mov_b32 v{T2}, v{mx}"), I("s_nop 1"), I(f"v_permlane32_swap_b32 v{mx}, v{T2}"),
         I(f"v_max_f32 v{mx}, v{mx}, v{T2}"), I(f"v_max_f32 v{mx}, 0, v{mx}"), I(f"v_exp_f32 v{T2}, -v{mx}")]
    for r in range(16): o.append(I(f"v_sub_f32 v{S+r}, v{S+r}, v{mx}"))
    for r in range(16): o.append(I(f"v_sub_f32 v{neg+r}, v{neg+r}, v{mx}"))
    o.append(I(f"v_mul_f32 v{l}, v{l}, v{T2}"))
    for r in range(64): o.append(I(f"v_mul_f32 v{obase+r}, v{obase+r}, v{T2}"))
    o += [I("s_nop 1"), I(f"s_setpc_b64 s[{SRET}:{SRET+1}]")]
    return o

def qk(tile, i, first=False):
    S = (SA, SB)[tile][i % 2]; neg = (NEGA, NEGB)[tile]
    o = []
    for s in range(8):
        c = ("0" if first else vr(neg, 16)) if s == 0 else vr(S, 16)
        o.append(mfma(vr(S, 16), ar(KF(s)), ar(QF(tile, s)), c))
    return o
def pv(tile, i):
    S = (SA, SB)[tile][i % 2]; O = (QA, QB)[tile]
    o = []
    for ks in range(2):
        for t in range(4):
            c = "0" if (i == 0 and ks == 0) else vr(O(t), 16)
            o.append(mfma(vr(O(t), 16), ar(VF(ks, t)), vr(S + 8 * ks), c))
    return o

def o_epi(tile, mods=""):
    O = (QA, QB)[tile]; l = (LA, LB)[tile]; ts = (STA, STB)[tile]; tmp = (T0, T1)[tile]
    pre = [I(f"v_mov_b32 v{tmp}, v{l}"), I(f"s_lshl_b32 s{ST2}, s{ts}, 18"), I(f"s_lshl_b32 s{ST}, s{SHEAD}, 13"),
           I(f"v_permlane32_swap_b32 v{l}, v{tmp}"), I(f"v_add_f32 v{l}, v{l}, v{tmp}"), I(f"v_rcp_f32 v{l}, v{l}"),
           I(f"s_add_u32 s{ST2}, s{ST2}, s{ST}"), I(f"s_add_u32 s{ST2}, s{ST2}, {O_OFF}")]
    body = []
    for t in range(4):
        if t == 2: body.append(I(f"s_add_u32 s{ST2}, s{ST2}, 4096"))
        for ks in range(2):
            b = O(t) + 8 * ks
            for r in range(8): body.append(I(f"v_mul_f32 v{b+r}, v{b+r}, v{l}"))
            for m in range(4): body.append(I(f"v_cvt_pk_bf16_f32 v{b+m}, v{b+2*m}, v{b+2*m+1}"))
            body.append(I(f"buffer_store_dwordx4 {vr(b)}, v{LANE16}, {srd(WS)}, s{ST2} offen offset:{((2*t+ks) % 4)*1024}{mods}", tag="ost"))
    return pre, body

def phase_a(pace=2.5, tail_ops=(), valu=()):
    NG = 31 * 11
    heads = [[] for _ in range(NG + 11)]
    ops = []
    def M(c): return (4 * c + 2) * 11 + 10
    for c in range(1, 8):
        if c >= 2:
            e = M(c - 3) + 1 if c >= 4 else 0
            ops += [(g, e) for g in w_ops(c)]
        for s_ in range(4 * c, 4 * c + 4): ops += [(g, 0) for g in xn_ops(s_)]
        if c == 7:
            pass
    ops += [(g, 0) for g in groups(k_dma(0))] + [(g, M(5) + 1) for g in groups(v_dma(0))]
    ops += [(g, 0) for g in tail_ops]
    pos = 0.0
    for g, e in ops:
        pos = max(pos, e)
        heads[int(pos)] += g
        pos += pace
    last_issue = int(pos - pace)
    assert last_issue < M(7) - 20, last_issue
    o = []
    for s in range(31):
        c, sp = divmod(s, 4); p = s % 2
        ms = []
        for t in range(4):
            for tile, acc in ((0, QA(t)), (1, QB(t))):
                ms.append(mfma(vr(acc, 16), vr(ASET(p, t)), ar(XN(s, tile)), "0" if s == 0 else vr(acc, 16)))
        ms.append(mfma(vr(HXA, 16), vr(ASET(p, 4)), ar(XN(s, 0)), vr(HXA, 16)))
        ms.append(mfma(vr(HXB, 16), vr(ASET(p, 4)), ar(XN(s, 1)), vr(HXB, 16)))
        ms.append(mfma(vr(HYA, 16), vr(ASET(p, 5)), ar(XN(s, 0)), vr(HYA, 16)))
        gaps = spread(a_reads(s + 1), 11, 0, 9)
        for k in range(11):
            pre = []
            if k == 5: pre.append(WaitLG(f"a{s}_5"))
            if k == 10:
                tg = [f"xn{s+1}"]
                if sp == 2: tg += [f"D{c+1}"] if c < 7 else ["K0", "V0"]
                pre += [WaitVM(*tg)]
                pre += [WaitLG(f"a{s+1}_5")] if s == 30 else [WaitLG(f"a{s+1}_2")]
                if sp == 2: pre.append(I("s_barrier"))
            h = heads[s * 11 + k]
            sc = [x for x in h if is_scalar(x)]; me = [x for x in h if not is_scalar(x)]
            gaps[k] = pre + sc + gaps[k] + me
        if s == 2: gaps[9] += list(valu)
        o += weave(ms, gaps)
    return o

def phase_b_prologue(hmods=""):
    o = []
    s = 31; p = 1
    ms = []
    for tile, Q in ((0, QA), (1, QB)):
        for t in range(4): ms.append(mfma(vr(Q(t), 16), vr(ASET(p, t)), ar(XN(s, tile)), vr(Q(t), 16)))
    ms.append(mfma(vr(HYA, 16), vr(ASET(p, 5)), ar(XN(s, 0)), vr(HYA, 16)))
    ms.append(mfma(vr(HXA, 16), vr(ASET(p, 4)), ar(XN(s, 0)), vr(HXA, 16)))
    ms.append(mfma(vr(HXB, 16), vr(ASET(p, 4)), ar(XN(s, 1)), vr(HXB, 16)))
    k1 = groups(k_dma(1)); v1 = groups(v_dma(1)); k2_ = groups(k_dma(2)); v2 = groups(v_dma(2)); k3 = groups(k_dma(3))
    heads = {0: [k_read(0, 0), k_read(0, 1)] + k1[0], 1: [k_read(0, 2), k_read(0, 3)] + k1[1], 2: [k_read(0, 4), k_read(0, 5)] + k1[2],
             3: [k_read(0, 6), k_read(0, 7)], 5: k1[3], 7: v1[0], 9: v1[1], 10: [WaitLG("k0_7")]}
    fill = []
    for t in range(4): fill += qconv(QA(t), 0, t)
    body, rest = pack(ms, fill, earliest={0: 3}, heads=heads)
    o += body
    ms = qk(0, 0, first=True)
    done_a = len(fill) - len(rest)
    fill2 = list(rest)
    for t in range(4): fill2 += qconv(QB(t), 1, t)
    need = {s_: max(0, 16 * (s_ // 2 + 1) - done_a) + (2 if 16 * (s_ // 2 + 1) > done_a else 0) for s_ in range(8)}
    body, rest2 = pack(ms, fill2, need=need, heads={1: v1[2], 4: v1[3]})
    o += body
    ms = qk(1, 0, first=True)
    done_b = 64 - len(rest2)
    fill3 = list(rest2) + h_epi(HYA, h_soff(STA, True), hmods) + maxchain(SA[0], MXA, first=True)
    need = {s_: max(0, 16 * (s_ // 2 + 1) - done_b) + (2 if 16 * (s_ // 2 + 1) > done_b else 0) for s_ in range(8)}
    body, rest3 = pack(ms, fill3, need=need, heads={s_: [k_read(1, s_)] for s_ in range(8)})
    o += body + rest3
    o += init_tile(SA[0], MXA, NEGA, LA)
    o += h_epi(HXA, h_soff(STA, False), hmods)
    g = sm_half(SA[0], 0, LA)
    mc = maxchain(SB[0], MXB, first=True)
    for k in range(8):
        o += g[k]
        if k % 2 == 1: o.append(mc[k // 2])
    o.append(WaitLG("k1_3"))
    return o, g[8], flat([k2_, v2, k3])

def phase_b(spill, dmaq, hmods="", omods="", name="attn", stamps=None):
    o = []
    NI = 16
    dmaq = list(dmaq)
    def addhead(gaps, k, items): gaps[k] = order_gap(items + gaps[k])
    for i in range(NI):
        last = i == NI - 1
        g_, par = divmod(i, 2)
        Sa, Sb = SA[i % 2], SB[i % 2]; San, Sbn = SA[(i + 1) % 2], SB[(i + 1) % 2]
        def smgaps(S, h2, l):
            nonlocal spill
            sm = sm_half(S, h2, l)
            gaps = [list(x) for x in sm[:8]]
            gaps[0] = [gaps[0][0]] + spill + gaps[0][1:]
            spill = sm[8]
            return gaps
        if stamps and i in stamps: o += stamp(stamps[i])
        ms = qk(0, i + 1) if not last else []
        gaps = smgaps(Sa, 1, LA)
        mc = maxchain(Sb, MXB, first=(i == 0))
        for k in range(4): gaps[2 * k + 1].append(mc[4 + k])
        vr_ = [v_read(i, 0, t, j2) for t in range(4) for j2 in range(2)]
        if i == 0:
            he = h_epi(HXB, h_soff(STB, False), hmods)
            st = [x for x in he if is_mem(x)]; he = [x for x in he if not is_mem(x)]
            gaps = merge(gaps, spread(he, 8, 0, 7))
            gaps[4].append(st[0]); gaps[7].append(st[1])
            gaps[4].remove(st[0]); gaps[5].append(st[0])
        for k in range(8): addhead(gaps, k, [vr_[k]])
        if not last:
            w = [WaitLG(f"k{i+1}_7")]
            if par == 0 and g_ <= 6:
                w = [WaitVM(f"K{g_+1}", f"V{g_+1}")] + w + [I("s_barrier")]
                if g_ + 4 <= 7: dmaq += groups(k_dma(g_ + 4))
                if g_ + 3 <= 7: dmaq += groups(v_dma(g_ + 3))
            gaps[3] = w + gaps[3]
            o += weave(ms, gaps)
        else:
            for k in range(8): o += gaps[k]
        if i == 0: o += init_tile(Sb, MXB, NEGB, LB)
        ms = qk(1, i + 1) if not last else []
        gaps = smgaps(Sb, 0, LB)
        mca = maxchain(San, MXA) if not last else None
        if not last:
            for k, gp in enumerate((3, 5, 6, 7)): gaps[gp].append(mca[k])
        vr_ = [v_read(i, 1, t, j2) for t in range(4) for j2 in range(2)]
        for k in range(8): addhead(gaps, k, [vr_[k]])
        gaps[7] = [WaitLG(f"v{i}_0")] + gaps[7]
        if not last: o += weave(ms, gaps)
        else:
            for k in range(8): o += gaps[k]
        ms = pv(0, i)
        gaps = smgaps(Sb, 1, LB)
        if not last:
            for k in range(4): gaps[2 * k + 1].append(mca[4 + k])
        if i + 2 < NI:
            for k in range(4): addhead(gaps, 2 * k, [k_read(i + 2, k)])
        for k in (1, 3, 5, 7):
            if dmaq:
                g = dmaq.pop(0)
                addhead(gaps, k - 1, g[:-1]); addhead(gaps, k, g[-1:])
        if last:
            pre_a, body_a = o_epi(0, omods)
            gaps = merge(gaps, spread(pre_a, 8, 1, 8))
        gaps[3] = [WaitLG(f"v{i}_1")] + gaps[3]
        o += weave(ms, gaps)
        ms = pv(1, i)
        if not last:
            gaps = smgaps(San, 0, LA)
            mc = maxchain(Sbn, MXB)
            for k in range(4): gaps[2 * k + 1].append(mc[k])
            if i + 2 < NI:
                for k in range(4): addhead(gaps, 2 * k, [k_read(i + 2, 4 + k)])
            for k in (1, 3, 5, 7):
                if dmaq:
                    g = dmaq.pop(0)
                    addhead(gaps, k - 1, g[:-1]); addhead(gaps, k, g[-1:])
            if i + 2 < NI: gaps[7] = [WaitLG(f"k{i+2}_3")] + gaps[7]
            o += weave(ms, gaps)
        else:
            body, rest = pack(ms, spill + body_a)
            o += body + rest
            pre_b, body_b = o_epi(1, omods)
            o += pre_b[:3] + [I("s_nop 0")] + pre_b[3:] + body_b
    assert not dmaq
    return o

def rare_subs(name="attn"):
    subs = []
    for k in range(2):
        subs.append((f"{name}_rare_a{k}", rare(f"{name}_rare_a{k}", SA[k], MXA, NEGA, LA, 0)))
        subs.append((f"{name}_rare_b{k}", rare(f"{name}_rare_b{k}", SB[k], MXB, NEGB, LB, 64)))
    return subs

def write_stamps(n, slot):
    o = []; A = lambda t, **k: o.append(I(t, **k))
    A(f"s_lshl_b32 s{ST}, s2, 6"); A(f"s_add_u32 s{ST}, s{ST}, {STAMP_OFF + slot*256*64}")
    A("s_cmp_lg_u32 s3, 0"); A(f"s_cbranch_scc1 stamps_done{slot}")
    A(f"v_mov_b32 v1, 0")
    for k in range(n):
        A(f"v_mov_b32 v2, s{90+k if k < 7 else 69}")
        A(f"v_mov_b32 v3, s{70+k if k else 97}")
        A(f"buffer_store_dword v2, v1, {srd(WS)}, s{ST} offen offset:{4*k}")
        A(f"buffer_store_dword v3, v1, {srd(WS)}, s{ST} offen offset:{32+4*k}")
        A("s_waitcnt vmcnt(0)")
    o.append(Label(f"stamps_done{slot}"))
    return o

def k2(name="attn_kernel", prof=False, pace=2.5):
    o = [I("s_cmp_ge_u32 s2, 256"), I(f"s_cbranch_scc1 {name}_end")]
    o += load_ptrs()
    if prof: o += stamp(0)
    o += decode_ids()
    o += lane_consts()
    o.append(WaitLG())
    o += srds()
    bl, bi = bias_init()
    o += bl
    o += [I(f"s_lshl_b32 s{SXA}, s{STA}, 15"), I(f"s_lshl_b32 s{SXB}, s{STB}, 15")]
    if XN_OFF: o += [I(f"s_add_u32 s{SXA}, s{SXA}, {XN_OFF}"), I(f"s_add_u32 s{SXB}, s{SXB}, {XN_OFF}")]
    o += flat(xn_ops(0)) + flat(w_ops(0)) + flat(xn_ops(1)) + flat(xn_ops(2)) + flat(xn_ops(3))
    o.append(I(f"s_mov_b32 s{STH}, {hexf(THRESH)}"))
    o += bi
    o += flat(w_ops(1))
    o += [WaitVM("D0"), I("s_barrier")]
    if prof == 1: o += stamp(1)
    o += a_reads(0) + [WaitLG("a0_2")]
    o += phase_a(pace)
    if prof == 1: o += stamp(2)
    body, spill, dmaq = phase_b_prologue()
    o += body
    if prof == 1: o += stamp(3)
    o += phase_b(spill, dmaq, name=name, stamps={0: 1, 2: 2, 6: 3, 10: 4, 14: 5, 15: 6} if prof == 2 else None)
    if prof == 1: o += stamp(4)
    if prof == 2: o += [I("s_memtime s[98:99]"), I("s_memrealtime s[100:101]"), I("s_waitcnt lgkmcnt(0)"), I("s_mov_b32 s69, s98"), I("s_mov_b32 s77, s100")]
    o += [WaitVM()]
    if prof == 1: o += stamp(5) + write_stamps(6, 1)
    if prof == 2: o += write_stamps(8, 1)
    o += [Label(f"{name}_end"), I("s_endpgm")]
    return o, []
```

```python
from common import *
import common, math
import k_attn as KA
from k_attn import (mfma, is_scalar, is_mem, order_gap, slots, flat, pack, groups, qk, pv, sm_half, maxchain, init_tile,
                    k_dma, v_dma, k_read, v_read, h_epi, h_soff, o_epi, qconv, xn_ops, w_ops, a_reads, bias_init,
                    QA, QB, HXA, HXB, HYA, ASET, SA, SB, NEGA, NEGB, TRA, TRW, VWQ, VW1X, VW1Y, LANE16, KRD, VK, VV,
                    LA, LB, MXA, MXB, T0, T1, T2, XN, QF, KF, VF, SHEAD, SRT, STA, STB, SXA, SXB, SWL4, SWL2, ST, ST2, STH,
                    LDS_W1, LDS_K)

NAME = "recurrent_scan__sliding_block_cached__dense_activation_squared_relu__prompt_kernel"
FLAG_OFF = 44 << 20
OOB = 0x20000000
STAG, SF1S, SF1P, SF2S, SF2P, SF3S, SF3P, SF4S, SF4P, SEO, SE1, SHG, SR, SC_, STQ, SXO, SSPIN = range(64, 81)
SO, SWO, SH, SW2, SPART = 52, 54, 53, 55, 56
SWL1 = 81
SC1 = " sc1"
LDS_VOTE = 163840 - 64
LDS_LN = LDS_K + 49152
THR_BITS = f2u(16.0)
IC2 = 1.0 / (CSC * CSC)
FACC = 176; AS3 = lambda p: 192 + 4 * p
ACC = lambda t: 16 * t
AS4 = lambda p, t: 64 + 16 * p + 4 * t
TRA2 = 96; XR = 100; PR = 108; TMP = 132
VWO = VWQ; VW2 = VW1X; VXO = VW1Y; TRW2 = KRD

def stamp(k):
    return [I("s_memtime s[82:83]"), I("s_memrealtime s[100:101]"), I("s_waitcnt lgkmcnt(0)"),
            I(f"s_mov_b32 s{84+k}, s82"), I(f"s_mov_b32 s{92+k}, s100")]
def write_stamps(n):
    o = []; A = lambda t, **k: o.append(I(t, **k))
    A(f"s_lshl_b32 s{ST}, s2, 6"); A(f"s_add_u32 s{ST}, s{ST}, {STAMP_OFF + 256*64}")
    A("s_cmp_lg_u32 s3, 0"); A(f"s_cbranch_scc1 stamps_done")
    A(f"v_mov_b32 v1, 0")
    for k in range(n):
        A(f"v_mov_b32 v2, s{84+k}"); A(f"v_mov_b32 v3, s{92+k}")
        A(f"buffer_store_dword v2, v1, {srd(WS)}, s{ST} offen offset:{4*k}")
        A(f"buffer_store_dword v3, v1, {srd(WS)}, s{ST} offen offset:{32+4*k}")
        A("s_waitcnt vmcnt(0)")
    o.append(Label("stamps_done"))
    return o

def decode_extra():
    o = []; A = lambda t, **k: o.append(I(t, **k))
    A(f"s_lshr_b32 s{SHG}, s{SHEAD}, 3")
    A(f"s_and_b32 s{ST}, s{SHEAD}, 7")
    A(f"s_lshr_b32 s{ST2}, s{ST}, 2")
    A(f"s_lshl_b32 s{SR}, s{SRT}, 1"); A(f"s_add_u32 s{SR}, s{SR}, s{ST2}")
    A(f"s_and_b32 s{SC_}, s{ST}, 3")
    A(f"s_lshl_b32 s{STQ}, s{SR}, 2"); A(f"s_add_u32 s{STQ}, s{STQ}, s3")
    A(f"s_lshl_b32 s{SXO}, s{STQ}, 15"); A(f"s_lshl_b32 s{ST2}, s{SC_}, 8"); A(f"s_add_u32 s{SXO}, s{SXO}, s{ST2}")
    A(f"s_lshl_b32 s{ST2}, s{SHG}, 6"); A(f"s_add_u32 s{SXO}, s{SXO}, s{ST2}")
    A(f"s_lshl_b32 s{SF2P}, s{SRT}, 7"); A(f"s_add_u32 s{SF1P}, s{SF2P}, {FLAG_OFF}")
    A(f"s_add_u32 s{SEO}, s{SF1P}, 32768")
    A(f"s_add_u32 s{SF2P}, s{SF1P}, 4096")
    A(f"s_lshl_b32 s{ST2}, s{SHEAD}, 2")
    A(f"s_add_u32 s{SF1S}, s{SF1P}, s{ST2}"); A(f"s_add_u32 s{SF2S}, s{SF2P}, s{ST2}")
    A(f"s_lshl_b32 s{ST2}, s3, 5"); A(f"s_add_u32 s{SF1P}, s{SF1P}, s{ST2}")
    A(f"s_lshl_b32 s{SF3P}, s{SRT}, 2"); A(f"s_add_u32 s{SF3P}, s{SF3P}, s{SHG}"); A(f"s_lshl_b32 s{SF3P}, s{SF3P}, 7")
    A(f"s_add_u32 s{SF3P}, s{SF3P}, {FLAG_OFF + 8192}")
    A(f"s_lshl_b32 s{ST2}, s{ST}, 2"); A(f"s_add_u32 s{SF3S}, s{SF3P}, s{ST2}")
    A(f"s_lshl_b32 s{SF4P}, s{SRT}, 3"); A(f"s_add_u32 s{SF4P}, s{SF4P}, s{ST}"); A(f"s_lshl_b32 s{SF4P}, s{SF4P}, 7")
    A(f"s_add_u32 s{SF4P}, s{SF4P}, {FLAG_OFF + 16384}")
    A(f"s_lshl_b32 s{ST2}, s{SHG}, 2"); A(f"s_add_u32 s{SF4S}, s{SF4P}, s{ST2}")
    A(f"s_lshl_b32 s{SWL1}, s3, 10")
    A("s_cmp_eq_u32 s3, 0")
    for r in (SF1S, SF2S, SF3S, SF4S): A(f"s_cselect_b32 s{r}, s{r}, {OOB}")
    return o

def all_srds():
    o = []; A = lambda t, **k: o.append(I(t, **k))
    o += KA.srds()
    o += make_srd(XS, P_X, 2048 * 1024) + make_srd(OUT, P_OUT, 2048 * 1024)
    A(f"s_lshr_b32 s{ST}, s{SHEAD}, 3"); A(f"s_lshl_b32 s{ST}, s{ST}, 20")
    A(f"s_and_b32 s{ST2}, s{SHEAD}, 3"); A(f"s_lshl_b32 s{ST2}, s{ST2}, 8"); A(f"s_add_u32 s{ST}, s{ST}, s{ST2}")
    o += make_srd(WO, P_WO, 4096 * 1024, off_sgpr=ST, size_minus_off=True)
    A(f"s_lshr_b32 s{ST}, s{SHEAD}, 3"); A(f"s_lshl_b32 s{ST}, s{ST}, 6"); A(f"s_add_u32 s{ST}, s{ST}, s{ST2}")
    o += make_srd(W2, P_W2, 1376 * 1024, off_sgpr=ST, size_minus_off=True)
    o += make_srd(B2, P_B2, 1024, off_sgpr=ST, size_minus_off=True)
    return o

def lane0_voff(r):
    return [I(f"v_min_u32 v{r}, 1, v{LANE16}"), I(f"v_lshlrev_b32 v{r}, 31, v{r}")]
def flag_store(soff, vd, va, val=STAG):
    return lane0_voff(va) + [I(f"v_mov_b32 v{vd}, s{val}")], I(f"buffer_store_dword v{vd}, v{va}, {srd(WS)}, s{soff} offen sc1", tag=f"fl{soff}")
def poll_prep(mask, va):
    return [I(f"v_lshrrev_b32 v{va}, 2, v{LANE16}"), I(f"v_and_b32 v{va}, {mask*4}, v{va}")]
def poll_load(soff, va, vd, tag):
    return I(f"buffer_load_dword v{vd}, v{va}, {srd(WS)}, s{soff} offen sc1", tag=tag)
def poll_check(name, soff, va, vd, subs):
    o = [I(f"v_cmp_ne_u32 vcc, s{STAG}, v{vd}"), I(f"s_cbranch_vccnz {name}_spin"), Label(f"{name}_ok")]
    subs.append((name, [Label(f"{name}_spin"), I(f"s_mov_b32 s{SSPIN}, 40000"), Label(f"{name}_l"),
        I("s_sleep 1"),
        I(f"buffer_load_dword v{vd}, v{va}, {srd(WS)}, s{soff} offen sc1"), I("s_waitcnt vmcnt(0)"),
        I(f"v_cmp_ne_u32 vcc, s{STAG}, v{vd}"), I(f"s_cbranch_vccz {name}_ok"),
        I(f"s_sub_u32 s{SSPIN}, s{SSPIN}, 1"), I(f"s_cmp_lg_u32 s{SSPIN}, 0"), I(f"s_cbranch_scc1 {name}_l"),
        I(f"s_branch {name}_ok")]))
    return o

def ln_part(touch_ops):
    o = []; A = lambda t, **k: o.append(I(t, **k))
    A(f"s_lshl_b32 s52, s{SRT}, 5"); A(f"s_add_u32 s52, s52, s{SHEAD}")
    A("v_and_b32 v1, 63, v0"); A("v_and_b32 v3, 7, v1"); A("v_lshrrev_b32 v4, 3, v1")
    A("s_lshl_b32 s53, s3, 4"); A("v_add_u32 v5, s53, v4")
    A("s_lshl_b32 s54, s52, 13")
    A("v_lshlrev_b32 v6, 10, v3"); A("v_lshl_add_u32 v6, v5, 4, v6")
    A(f"buffer_load_dwordx4 v[8:11], v6, {srd(XS)}, s54 offen", tag="x0")
    A(f"buffer_load_dwordx4 v[12:15], v6, {srd(XS)}, s54 offen offset:128", tag="x1")
    A("v_mov_b32 v48, 0")
    A(f"buffer_load_dword v49, v48, {srd(WS)}, s{SEO} offen sc1", tag="e0")
    o += touch_ops
    A("s_lshr_b32 s53, s52, 2"); A("s_lshl_b32 s53, s53, 15"); A("s_and_b32 s54, s52, 3"); A("s_lshl_b32 s54, s54, 7")
    A("s_add_u32 s53, s53, s54")
    A("v_lshlrev_b32 v7, 4, v3"); A("v_lshl_add_u32 v7, v5, 9, v7"); A("v_add_u32 v50, 0x1000, v7")
    A("v_lshlrev_b32 v51, 4, v3"); A(f"v_add_u32 v51, {LDS_LN}, v51")
    A("s_lshl_b32 s54, s3, 2"); A("v_add_u32 v52, s54, v51")
    o.append(WaitVM("x1"))
    for i in range(8):
        A(f"v_lshlrev_b32 v{16+2*i}, 16, v{8+i}"); A(f"v_and_b32 v{17+2*i}, 0xffff0000, v{8+i}")
    def reduce(ldsoff):
        A("s_nop 1")
        A("v_add_f32_dpp v33, v32, v32 row_ror:8 row_mask:0xf bank_mask:0xf")
        A("v_mov_b32 v34, v33"); A("s_nop 1"); A("v_permlane16_swap_b32 v33, v34"); A("v_add_f32 v33, v33, v34")
        A("v_mov_b32 v34, v33"); A("s_nop 1"); A("v_permlane32_swap_b32 v33, v34"); A("v_add_f32 v33, v33, v34")
        A(f"ds_write_b32 v52, v33 offset:{ldsoff}", tag=f"rw{ldsoff}", wr=(f"ln{ldsoff}", 0))
        o.append(WaitLG()); A("s_barrier")
        A(f"ds_read_b128 v[36:39], v51 offset:{ldsoff}", tag=f"rr{ldsoff}", rd=(f"ln{ldsoff}", 0))
        o.append(WaitLG())
        A("v_add_f32 v36, v36, v37"); A("v_add_f32 v38, v38, v39"); A("v_add_f32 v36, v36, v38")
    for i in range(8): A(f"v_add_f32 v{40+i}, v{16+2*i}, v{17+2*i}")
    for i in range(4): A(f"v_add_f32 v{40+i}, v{40+2*i}, v{41+2*i}")
    A("v_add_f32 v40, v40, v41"); A("v_add_f32 v42, v42, v43"); A("v_add_f32 v32, v40, v42")
    reduce(0)
    A(f"v_mul_f32 v35, {hexf(-1.0/512)}, v36")
    for i in range(16): A(f"v_add_f32 v{16+i}, v{16+i}, v35")
    for i in range(4):
        A(f"v_mul_f32 v{40+i}, v{16+4*i}, v{16+4*i}")
        for j in range(1, 4): A(f"v_fmac_f32 v{40+i}, v{16+4*i+j}, v{16+4*i+j}")
    A("v_add_f32 v40, v40, v41"); A("v_add_f32 v42, v42, v43"); A("v_add_f32 v32, v40, v42")
    reduce(128)
    A(f"v_mov_b32 v37, {hexf(1e-5)}"); A(f"v_fmac_f32 v37, {hexf(1.0/512)}, v36")
    A("v_rsq_f32 v37, v37"); A("s_nop 0"); A(f"v_mul_f32 v37, {hexf(CSC)}, v37")
    for i in range(16): A(f"v_mul_f32 v{16+i}, v{16+i}, v37")
    for i in range(8): A(f"v_cvt_pk_bf16_f32 v{8+i}, v{16+2*i}, v{17+2*i}")
    A(f"buffer_store_dwordx4 v[8:11], v7, {srd(WS)}, s53 offen sc1", tag="xs")
    A(f"buffer_store_dwordx4 v[12:15], v50, {srd(WS)}, s53 offen sc1", tag="xs")
    o.append(WaitVM("e0"))
    A(f"v_readfirstlane_b32 s{SE1}, v49")
    A("s_nop 1")
    A(f"s_mul_i32 s{STAG}, s{SE1}, 0x9E3779B1"); A(f"s_add_u32 s{STAG}, s{STAG}, 0x7F4A7C15")
    A(f"s_add_u32 s{SE1}, s{SE1}, 1")
    A(f"s_or_b32 s{ST}, s{SHEAD}, s3"); A(f"s_cmp_eq_u32 s{ST}, 0"); A(f"s_cselect_b32 s{SEO}, s{SEO}, {OOB}")
    return o

def touch_w(rows_from=128):
    o = []; A = lambda t, **k: o.append(I(t, **k))
    A(f"s_and_b32 s55, s{SRT}, 3"); A("s_lshl_b32 s55, s55, 8")
    A("v_add_u32 v53, s55, v0")
    A("v_lshrrev_b32 v54, 1, v53")
    A("v_and_b32 v55, 1, v53")
    A("v_lshlrev_b32 v56, 13, v54"); A("v_lshl_add_u32 v56, v55, 7, v56")
    A(f"buffer_load_dword v60, v56, {srd(WQ)}, 0 offen", tag="t0")
    A("v_mul_u32_u24 v57, 2752, v54")
    A(f"s_lshl_b32 s56, s{SHEAD}, 6")
    A(f"s_lshr_b32 s55, s{SHEAD}, 1"); A("s_lshl_b32 s55, s55, 6"); A("s_add_u32 s55, s55, 2048"); A("s_sub_u32 s55, s55, s56")
    A("v_mul_u32_u24 v58, s55, v55"); A("v_add_u32 v57, v57, v58")
    A(f"buffer_load_dword v61, v57, {srd(W1)}, s56 offen", tag="t1")
    return o

def touch_kv(va, vd):
    val = [I(f"s_and_b32 s{ST}, s{SRT}, 3"), I(f"s_lshl_b32 s{ST}, s{ST}, 9"), I(f"s_lshl_b32 s{ST2}, s3, 7"), I(f"s_add_u32 s{ST}, s{ST}, s{ST2}"),
           I(f"v_lshlrev_b32 v{va}, 7, v{LANE16}"), I(f"v_add_u32 v{va}, s{ST}, v{va}")]
    return val, [[I(f"buffer_load_dword a{vd}, v{va}, {srd(KS)}, 0 offen", tag="tk")], [I(f"buffer_load_dword a{vd+1}, v{va}, {srd(VS)}, 0 offen", tag="tv")]]

def w2_ops(q):
    slot = {True: None}.get(False)
    if q < 8: reg = (f"W{q//2}", 200)
    else: reg = (f"K{(q-8)//4}", 200)
    return [[I(f"s_add_u32 m0, s{SWL1}, {LDS_W1 + q*4096}"), I(f"s_mov_b32 s{SW2}, {q*65536}"),
             I(f"buffer_load_dwordx4 v{VW2}, {srd(W2)}, s{SW2} offen lds", tag=f"W2{q}", wr=reg)]]
def w2_region(q): return (f"W{q//2}", 200) if q < 8 else (f"K{(q-8)//4}", 200)
def HF(s):
    if s < 32: return 128 + 4 * s
    if s < 64: return 4 * (s - 32)
    return 128 + 4 * (s - 64)
def h_ops(s):
    pre = [I(f"s_add_u32 s{SH}, s{SH}, 4096")] if (s % 4 == 0 and s > 0) else []
    return [pre + [I(f"buffer_load_dwordx4 {ar(HF(s))}, v{LANE16}, {srd(WS)}, s{SH} offen offset:{1024*(s%4)} sc1", tag=f"h{s}")]]
def p3_reads(s):
    off = s * 1024; base = TRW
    if off >= 65536: base = TRW2; off -= 65536
    return [I(f"ds_read_b64_tr_b16 {vr(AS3(s % 4) + 2*j2, 2)}, v{base} offset:{off + j2*256}", tag=f"w{s}", rd=w2_region(s // 4)) for j2 in range(2)]
def wo_region(ch):
    slot = ch % 8
    if slot < 4: return (f"A{slot}", 300 + ch)
    return (f"P{slot}", 300 + ch)
def wo_ops(ch):
    slot = ch % 8; g = []
    for j in range(4):
        pre = [I(f"s_add_u32 m0, s{SWL4}, {slot*16384}"), I(f"s_mov_b32 s{SWO}, {ch*65536}")] if j == 0 else []
        g.append(pre + [I(f"buffer_load_dwordx4 v{VWO+j}, {srd(WO)}, s{SWO} offen offset:{1024*j} lds", tag=f"WO{ch}", wr=wo_region(ch))])
    return g
def OF(s): return 4 * ((s + 32) % 64)
def o_ops(s):
    pre = [I(f"s_add_u32 s{SO}, s{SO}, 4096")] if (s % 4 == 0 and s > 0) else []
    return [pre + [I(f"buffer_load_dwordx4 {ar(OF(s))}, v{LANE16}, {srd(WS)}, s{SO} offen offset:{1024*(s%4)} sc1", tag=f"o{s}")]]
def p4_reads(s):
    ch, sp = divmod(s, 4); slot = ch % 8; p = s % 2
    base = TRA if slot < 4 else TRA2
    return [I(f"ds_read_b64_tr_b16 {vr(AS4(p, t) + 2*j2, 2)}, v{base+t} offset:{(slot % 4)*16384 + sp*4096 + j2*1024}", tag=f"p{s}_{t}", rd=wo_region(ch))
            for t in range(4) for j2 in range(2)]

def out_voffs():
    o = []; A = lambda t: o.append(I(t))
    A(f"v_and_b32 v{T0}, 0xf0, v{VV}")
    A(f"v_and_b32 v{VWO}, 0x300, v{LANE16}")
    A(f"v_lshl_add_u32 v{VWO}, v{VWO}, 2, v{T0}")
    A(f"s_lshl_b32 s{ST}, s3, 14")
    A(f"v_add_u32 v{VWO}, s{ST}, v{VWO}")
    for j in range(1, 4): A(f"v_add_u32 v{VWO+j}, {j*3072}, v{VWO}")
    A(f"v_and_b32 v{T0}, 0x3c0, v{LANE16}")
    A(f"v_and_b32 v{VW2}, 0x30, v{LANE16}")
    A(f"v_lshl_add_u32 v{VW2}, v{T0}, 4, v{VW2}")
    A(f"v_add_u32 v{VW2}, s{ST}, v{VW2}")
    A(f"v_and_b32 v{T0}, 0x1f0, v{LANE16}")
    A(f"v_lshrrev_b32 v{VXO}, 9, v{LANE16}")
    A(f"v_lshlrev_b32 v{VXO}, 4, v{VXO}")
    A(f"v_lshl_add_u32 v{VXO}, v{T0}, 6, v{VXO}")
    return o

def touch_out(va, vb, ad):
    val = [I(f"s_and_b32 s{ST}, s{SR}, 7"), I(f"s_lshl_b32 s{ST}, s{ST}, 2"), I(f"s_add_u32 s{ST}, s{ST}, s3"),
           I(f"s_lshl_b32 s{ST2}, s{ST}, 15"),
           I(f"v_lshrrev_b32 v{va}, 5, v{LANE16}"), I(f"v_lshlrev_b32 v{va}, 10, v{va}"),
           I(f"v_and_b32 v{vb}, 16, v{LANE16}"), I(f"v_lshl_add_u32 v{va}, v{vb}, 3, v{va}"),
           I(f"v_add_u32 v{va}, s{ST2}, v{va}"),
           I(f"s_mul_i32 s{ST2}, s{ST}, {43*1024}"), I(f"v_lshlrev_b32 v{vb}, 6, v{LANE16}"), I(f"v_add_u32 v{vb}, s{ST2}, v{vb}")]
    g1 = [I(f"buffer_load_dword a{ad}, v{va}, {srd(WO)}, 0 offen", tag="two")]
    g2 = [I(f"buffer_load_dword a{ad+1}, v{vb}, {srd(W2)}, 0 offen", tag="tw2")]
    return val, g1, g2

class Q:
    def __init__(self): self.items = []; self.n = 0; self.sticky = None
    def add(self, prio, gs, earliest=0):
        for g in gs:
            self.items.append((prio, self.n, earliest, g)); self.n += 1
    @staticmethod
    def follower(g): return g[-1].text.endswith(" lds") and not any("m0" in x.text for x in g[:-1])
    def pop(self, now):
        if self.sticky is not None:
            nx = [x for x in self.items if x[1] == self.sticky + 1 and Q.follower(x[3])]
            if nx:
                self.items.remove(nx[0]); self.sticky = nx[0][1]; return nx[0][3]
        c = sorted((x for x in self.items if x[2] <= now), key=lambda x: x[:2])
        if not c: return None
        assert not Q.follower(c[0][3])
        self.items.remove(c[0]); self.sticky = c[0][1]; return c[0][3]

def phase_b(spill, dmaq0, subs, restart=False, prof=None, cfg=None):
    cfg = cfg or {}
    o = []
    NI = 16
    q = Q()
    if not restart: q.add(0, dmaq0)
    def addhead(gaps, k, items): gaps[k] = order_gap(items + gaps[k])
    sparev = {}
    if not restart:
        fv, fs = flag_store(SF2S, T1, T2)
        tv, tg1, tg2 = touch_out(T0, T1, 130)
        ev, es = flag_store(SEO, T1, T2, val=SE1)
        TI = cfg.get("touch_it", 3)
        sparev[1] = out_voffs(); sparev[2] = fv
        q.add(-1, [[fs]], 2)
        q.add(2, flat([w2_ops(x) for x in range(8)]), TI + 2)
        sparev[TI] = tv; q.add(1, [tg1, tg2], TI)
        PI = 4
        assert TI < PI
        sparev[PI] = poll_prep(31, T0) + [I(f"s_mul_i32 s{SH}, s{STQ}, {86*1024}"), I(f"s_add_u32 s{SH}, s{SH}, {H_OFF}")]
        q.add(1, [[poll_load(SF2P, T0, T1, "pf2")]], PI)
        sparev[7] = ev; q.add(1, [[es]], 7)
        q.add(3, flat([h_ops(s) for s in range(32)]), 6)
        q.add(2, flat([w2_ops(x) for x in range(8, 12)]), 8)
        q.add(2, flat([w2_ops(x) for x in range(12, 16)]), 10)
        q.add(2, flat([w2_ops(x) for x in range(16, 20)]), 12)
        q.add(2, flat([w2_ops(x) for x in range(20, 22)]), 14)
        q.add(4, wo_ops(0), 10); q.add(4, wo_ops(1), 12); q.add(4, wo_ops(2), 14)
        sparev[14] = [I(f"v_add_u32 v{TRW2}, 0x10000, v{TRW}"), I(f"v_and_b32 v{T0}, 16, v{VXO}")]
        q.add(1, [[I(f"buffer_load_dwordx4 {vr(208)}, v{T0}, {srd(B2)}, 0 offen", tag="b2")],
                  [I(f"buffer_load_dwordx4 {vr(212)}, v{T0}, {srd(B2)}, 0 offen offset:32", tag="b2")]], 14)
    for i in range(NI):
        if restart and i == 1: break
        if i == 1: o.append(Label("it1_entry"))
        if prof and i in prof: o += stamp(prof[i])
        last = i == NI - 1
        g_, par = divmod(i, 2)
        Sa, Sb = SA[i % 2], SB[i % 2]; San, Sbn = SA[(i + 1) % 2], SB[(i + 1) % 2]
        sp = list(sparev.get(i, []))
        def sprinkle(gaps):
            for k in range(8):
                while sp and is_scalar(sp[0]): gaps[k].append(sp.pop(0))
                if sp: gaps[k].append(sp.pop(0))
        def smgaps(S, h2, l):
            nonlocal spill
            sm = sm_half(S, h2, l)
            gaps = [list(x) for x in sm[:8]]
            gaps[0] = [gaps[0][0]] + spill + gaps[0][1:]
            spill = sm[8]
            return gaps
        def vmfill(gaps, ks):
            for k in ks:
                g = q.pop(i)
                if g:
                    sc = g[:-1]
                    if k > 0 and (k - 1) not in ks: addhead(gaps, k - 1, sc); addhead(gaps, k, g[-1:])
                    else: addhead(gaps, k, g)
        ms = qk(0, i + 1) if not last else []
        gaps = smgaps(Sa, 1, LA)
        mc = maxchain(Sb, MXB, first=(i == 0 and not restart))
        for k in range(4): gaps[2 * k + 1].append(mc[4 + k])
        vr_ = [v_read(i, 0, t, j2) for t in range(4) for j2 in range(2)]
        if i == 0 and not restart:
            he = h_epi(HXB, h_soff(STB, False), SC1)
            st = [x for x in he if is_mem(x)]; he = [x for x in he if not is_mem(x)]
            gaps = merge(gaps, spread(he, 8, 0, 7))
            gaps[5].append(st[0]); gaps[7].append(st[1])
        for k in range(8): addhead(gaps, k, [vr_[k]])
        sprinkle(gaps)
        if not last:
            w = [WaitLG(f"k{i+1}_7")]
            if par == 0:
                tg = [f"K{g_+1}", f"V{g_+1}"] if g_ <= 6 else []
                if i == 2: tg.append("hst")
                if i == 6: tg.append("pf2")
                if restart: tg = []
                w = ([WaitVM(*tg)] if tg else []) + w + [I("s_barrier")]
                if not restart:
                    if g_ + 4 <= 7: q.add(0, groups(k_dma(g_ + 4)), i)
                    if g_ + 3 <= 7: q.add(0, groups(v_dma(g_ + 3)), i)
            gaps[3] = w + gaps[3]
            o += weave(ms, gaps)
        else:
            for k in range(8): o += gaps[k]
            o += [I(f"v_max_f32 v{T2}, v{MXA}, v{MXB}"), I(f"s_lshl_b32 s{ST}, s3, 2"), I(f"v_cmp_lt_f32 vcc, s{STH}, v{T2}"),
                  I(f"s_add_u32 s{ST}, s{ST}, {LDS_VOTE}"), I(f"v_mov_b32 v{T0}, s{ST}"),
                  I("s_cmp_lg_u64 vcc, 0"), I(f"s_cselect_b32 s{ST2}, 1, 0"), I(f"v_mov_b32 v{T1}, s{ST2}"),
                  I(f"ds_write_b32 v{T0}, v{T1}", tag="vw", wr=("vote", 0))]
        if i == 6 and not restart: o += poll_check("h2", SF2P, T0, T1, subs)
        if i == 0 and not restart: o += init_tile(Sb, MXB, NEGB, LB)
        ms = qk(1, i + 1) if not last else []
        gaps = smgaps(Sb, 0, LB)
        mca = maxchain(San, MXA) if not last else None
        if not last:
            for k, gp in enumerate((3, 5, 6, 7)): gaps[gp].append(mca[k])
        vr_ = [v_read(i, 1, t, j2) for t in range(4) for j2 in range(2)]
        for k in range(8): addhead(gaps, k, [vr_[k]])
        sprinkle(gaps)
        assert not sp, (i, sp)
        gaps[7] = [WaitLG(f"v{i}_0")] + gaps[7]
        if not last: o += weave(ms, gaps)
        else:
            gaps[2] = [WaitLG("vw"), I("s_barrier"), I(f"v_mov_b32 v{T0}, {LDS_VOTE}")] + gaps[2]
            gaps[4] = [I(f"ds_read_b128 {vr(216)}, v{T0}", tag="vr", rd=("vote", 0))] + gaps[4]
            for k in range(8): o += gaps[k]
            o += [WaitLG("vr"), I(f"v_or3_b32 v216, v216, v217, v218"), I(f"v_or_b32 v216, v216, v219"), I("s_nop 0"),
                  I(f"v_readfirstlane_b32 s{ST}, v216"), I("s_nop 1"), I(f"s_cmp_lg_u32 s{ST}, 0"), I("s_cbranch_scc1 restart")]
            q.add(3, flat([h_ops(s) for s in range(32, 56)]), i)
        ms = pv(0, i)
        gaps = smgaps(Sb, 1, LB)
        if not last:
            for k in range(4): gaps[2 * k + 1].append(mca[4 + k])
        if i + 2 < NI:
            for k in range(4): addhead(gaps, 2 * k, [k_read(i + 2, k)])
            vmfill(gaps, (1, 3, 5, 7))
        else: vmfill(gaps, range(8))
        if last:
            pre_a, body_a = o_epi(0, SC1)
            gaps = merge(gaps, spread(pre_a, 8, 1, 8))
        gaps[3] = [WaitLG(f"v{i}_1")] + gaps[3]
        o += weave(ms, gaps)
        ms = pv(1, i)
        if not last:
            gaps = smgaps(San, 0, LA)
            mc = maxchain(Sbn, MXB)
            for k in range(4): gaps[2 * k + 1].append(mc[k])
            if i + 2 < NI:
                for k in range(4): addhead(gaps, 2 * k, [k_read(i + 2, 4 + k)])
                vmfill(gaps, (1, 3, 5, 7))
                gaps[7] = [WaitLG(f"k{i+2}_3")] + gaps[7]
            else: vmfill(gaps, range(8))
            o += weave(ms, gaps)
        else:
            body, rest = pack(ms, spill + body_a)
            o += body + rest
            pre_b, body_b = o_epi(1, SC1)
            o += pre_b[:3] + [I("s_nop 0")] + pre_b[3:] + body_b
    if restart: return o
    return o, q

def restart_code():
    o = [Label("restart"), I("s_waitcnt vmcnt(0) lgkmcnt(0)"), I("s_nop 15"), I("s_barrier")]
    A = lambda t, **k: o.append(I(t, **k))
    for mx, neg, l in ((MXA, NEGA, LA), (MXB, NEGB, LB)):
        A(f"v_mov_b32 v{T2}, v{mx}"); A("s_nop 1"); A(f"v_permlane32_swap_b32 v{mx}, v{T2}"); A(f"v_max_f32 v{T2}, v{mx}, v{T2}")
        A(f"v_sub_f32 v{neg+15}, v{neg+15}, v{T2}")
        for r in range(15): A(f"v_mov_b32 v{neg+r}, v{neg+15}")
        A(f"v_mov_b32 v{mx}, 0"); A(f"v_mov_b32 v{l}, 0")
    A(f"s_mov_b32 s{STH}, 0x7f800000")
    A(f"v_xor_b32 v{KRD}, 32, v{KRD+1}")
    for p in range(3): o += k_dma(p) + v_dma(p)
    o += [WaitVM(), I("s_barrier")]
    o += [k_read(0, s) for s in range(8)] + [WaitLG()]
    o += qk(0, 0) + qk(1, 0)
    o += [k_read(1, s) for s in range(8)] + [I("s_nop 15")]
    o += maxchain(SA[0], MXA)
    g = sm_half(SA[0], 0, LA); mc = maxchain(SB[0], MXB)
    for k in range(8):
        o += g[k]
        if k % 2 == 1: o.append(mc[k // 2])
    o.append(WaitLG())
    o += phase_b(g[8], None, None, restart=True)
    o.append(I("s_branch it1_entry"))
    return o

def gate_valu():
    o = []; A = lambda t: o.append(I(t))
    A(f"s_mov_b32 s{ST}, {hexf(-IC2 * math.log2(math.e))}"); A(f"s_mov_b32 s{ST2}, {hexf(IC2)}")
    E = TMP + 16
    for r0 in range(0, 16, 4):
        R = range(r0, r0 + 4)
        for r in R: A(f"v_mul_f32 v{E+r-r0}, s{ST}, v{FACC+r}")
        for r in R: A(f"v_exp_f32 v{E+r-r0}, v{E+r-r0}")
        for r in R: A(f"v_mul_f32 v{FACC+r}, s{ST2}, v{FACC+r}")
        for r in R: A(f"v_add_f32 v{E+r-r0}, 1.0, v{E+r-r0}")
        for r in R: A(f"v_rcp_f32 v{E+r-r0}, v{E+r-r0}")
        A("s_nop 0")
        for r in R: A(f"v_mul_f32 v{FACC+r}, v{FACC+r}, v{E+r-r0}")
    return o

def p3(q, subs, cfg):
    o = []; NS = 86
    left = []
    while True:
        g = q.pop(99)
        if not g: break
        left.append(g)
    o += [WaitVM("b2"), I(f"s_mov_b32 s{ST2}, {hexf(CSC*CSC)}")]
    for m in range(8):
        o.append(I(f"v_lshlrev_b32 v{FACC+2*m}, 16, v{208+m}")); o.append(I(f"v_and_b32 v{FACC+2*m+1}, 0xffff0000, v{208+m}"))
    for r in range(16): o.append(I(f"v_mul_f32 v{FACC+r}, s{ST2}, v{FACC+r}"))
    ops = left + flat([h_ops(s) for s in range(56, 64)])
    fv, fs = flag_store(SF3S, T1, T2)
    o += fv
    o += [WaitVM("W219"), I("s_barrier")]
    o += p3_reads(0) + p3_reads(1)
    ops += wo_ops(3)
    late = flat([h_ops(s) for s in range(64, 86)])
    FL = cfg.get("f3_step", 12)
    PL = cfg.get("p3_poll", 70)
    pi = 0; li = 0
    for s in range(NS):
        m = mfma(vr(FACC, 16), vr(AS3(s % 4)), ar(HF(s)), vr(FACC, 16))
        pre = [WaitVM(f"h{s}"), WaitLG(f"w{s}")]
        gap = []
        if s == FL: gap += [WaitVM("ost", "W221"), I("s_barrier"), fs]
        if s + 2 < NS: gap += p3_reads(s + 2)
        if pi < len(ops): gap += ops[pi]; pi += 1
        elif li < len(late) and 64 + li - 64 < s: gap += late[li]; li += 1
        if s == PL - 2: gap += poll_prep(7, T0) + [I(f"s_lshl_b32 s{SO}, s{STQ}, 18"), I(f"s_lshl_b32 s{ST}, s{SHG}, 16"), I(f"s_add_u32 s{SO}, s{SO}, s{ST}"), I(f"s_add_u32 s{SO}, s{SO}, {O_OFF}")]
        if s == PL: gap += [poll_load(SF3P, T0, T1, "pf3")]
        o += pre + [m] + gap
    assert pi == len(ops) and li == len(late), (pi, len(ops), li)
    return o

def p4(subs, cfg):
    o = []; NS = 64
    pace = cfg.get("p4_pace", 1.5)
    o += [WaitVM("pf3")] + poll_check("h3", SF3P, T0, T1, subs)
    for s in range(6): o += flat(o_ops(s))
    for t in range(4): o.append(I(f"v_add_u32 v{TRA2+t}, 0x10000, v{TRA+t}"))
    o += [WaitVM("WO3"), I("s_barrier")]
    o += p4_reads(0)
    def M(g): return (8 * g + 6) * 4 + 3
    ops = []
    for g in range(2, 8):
        e = M(g - 3) + 1 if g >= 4 else 0
        ops += [(M(g - 1), x, e) for x in wo_ops(2 * g) + wo_ops(2 * g + 1)]
    for s in range(6, 64): ops += [(4 * s - 1, x, 0) for x in o_ops(s)]
    ops += [(200, [x], 0) for x in x_load()]
    ops.sort(key=lambda z: z[0])
    heads = [[] for _ in range(NS * 4 + 64)]
    pos = 0.0
    for _, g, e in ops:
        pos = max(pos, e); heads[int(pos)] += g; pos += pace
    assert int(pos - pace) < (NS - 2) * 4, pos
    valu = gate_valu()
    o += [WaitVM("o0"), WaitLG("p0_1")]
    for s in range(NS):
        p = s % 2
        ms = [mfma(vr(ACC(t), 16), vr(AS4(p, t)), ar(OF(s)), "0" if s == 0 else vr(ACC(t), 16)) for t in range(4)]
        rd = p4_reads(s + 1) if s + 1 < NS else []
        gaps = [rd[0:3], rd[3:6], rd[6:8], []]
        for k in range(4):
            pre = []
            if k == 1: pre.append(WaitLG(f"p{s}_3"))
            if k == 3 and s + 1 < NS:
                tg = [f"o{s+1}"]
                bar = s % 8 == 6 and 1 <= s // 8 < 7
                if bar: tg.append(f"WO{2*(s//8)+3}")
                pre += [WaitVM(*tg), WaitLG(f"p{s+1}_1")]
                if bar: pre.append(I("s_barrier"))
            h = heads[s * 4 + k]
            sc = [x for x in h if is_scalar(x)]; me = [x for x in h if not is_scalar(x)]
            gaps[k] = pre + sc + gaps[k] + me
            c = sum(slots(x) for x in gaps[k]) - 1
            while valu and c + slots(valu[0]) <= 6 and s >= 2:
                c += slots(valu[0]); gaps[k].append(valu.pop(0))
        o += weave(ms, gaps)
    assert not valu
    return o

def x_load():
    return [I(f"buffer_load_dwordx4 {vr(XR)}, v{VXO}, {srd(XS)}, s{SXO} offen", tag="xr"),
            I(f"buffer_load_dwordx4 {vr(XR+4)}, v{VXO}, {srd(XS)}, s{SXO} offen offset:32", tag="xr")]

def exchange(subs):
    o = []; A = lambda t, **k: o.append(I(t, **k))
    A(f"s_lshl_b32 s{SPART}, s{SR}, 2"); A(f"s_add_u32 s{SPART}, s{SPART}, s{SC_}"); A(f"s_lshl_b32 s{SPART}, s{SPART}, 17")
    A(f"s_add_u32 s{SPART}, s{SPART}, {PART_OFF}"); A(f"s_add_u32 s{SPART}, s{SPART}, s{SWL2}")
    A(f"s_lshl_b32 s{ST}, s{SHG}, 13"); A(f"s_add_u32 s{SO}, s{SPART}, s{ST}")
    fv, fs = flag_store(SF4S, T1, T2)
    o += fv + poll_prep(3, T0)
    A("s_nop 4")
    for t in range(4):
        A(f"s_add_u32 s{ST2}, s{SO}, {t << 15}"); A(f"s_cmp_eq_u32 s{SHG}, {t}"); A(f"s_cselect_b32 s{ST2}, {OOB}, s{ST2}")
        for half in range(2):
            b = ACC(t) + 8 * half; d = 64 + 8 * t + 4 * half
            for m in range(4): A(f"v_cvt_pk_bf16_f32 v{d+m}, v{b+2*m}, v{b+2*m+1}")
            A(f"buffer_store_dwordx4 {vr(d)}, v{LANE16}, {srd(WS)}, s{ST2} offen offset:{1024*half} sc1", tag="pst")
    for t in range(4):
        A(f"s_cmp_eq_u32 s{SHG}, {t}"); A(f"s_cbranch_scc0 own{t}_skip")
        for r in range(16): A(f"v_mov_b32 v{TMP+r}, v{ACC(t)+r}")
        o.append(Label(f"own{t}_skip"))
    o += [WaitVM("pst"), I("s_barrier"), fs]
    o += [poll_load(SF4P, T0, T1, "pf4"), WaitVM("pf4")] + poll_check("h4", SF4P, T0, T1, subs)
    A(f"s_lshl_b32 s{ST}, s{SHG}, 15"); A(f"s_add_u32 s{SPART}, s{SPART}, s{ST}")
    for k in range(3):
        A(f"s_add_u32 s{ST}, s{SHG}, {k+1}"); A(f"s_and_b32 s{ST}, s{ST}, 3"); A(f"s_lshl_b32 s{ST}, s{ST}, 13"); A(f"s_add_u32 s{ST2}, s{SPART}, s{ST}")
        for half in range(2):
            A(f"buffer_load_dwordx4 {vr(PR + 8*k + 4*half)}, v{LANE16}, {srd(WS)}, s{ST2} offen offset:{1024*half} sc1", tag=f"pld{k}")
    S = TMP + 16
    for k in range(3):
        o.append(WaitVM(f"pld{k}"))
        for m in range(8):
            A(f"v_lshlrev_b32 v{S}, 16, v{PR+8*k+m}"); A(f"v_and_b32 v{S+1}, 0xffff0000, v{PR+8*k+m}")
            A(f"v_add_f32 v{TMP+2*m}, v{TMP+2*m}, v{S}"); A(f"v_add_f32 v{TMP+2*m+1}, v{TMP+2*m+1}, v{S+1}")
    for half in range(2):
        for m in range(4):
            k = 4 * half + m
            A(f"v_lshlrev_b32 v{S}, 16, v{XR+k}"); A(f"v_and_b32 v{S+1}, 0xffff0000, v{XR+k}")
            A(f"v_fmac_f32 v{S}, v{TMP+2*k}, v{FACC+2*k}"); A(f"v_fmac_f32 v{S+1}, v{TMP+2*k+1}, v{FACC+2*k+1}")
            A(f"v_cvt_pk_bf16_f32 v{XR+k}, v{S}, v{S+1}")
        A(f"buffer_store_dwordx4 {vr(XR+4*half)}, v{VXO}, {srd(OUT)}, s{SXO} offen offset:{32*half}", tag="out")
    return o

def kernel(prof=0, cfg=None):
    cfg = cfg or {}
    KA.XN_MODS = SC1
    subs = []
    o = [I("s_cmp_ge_u32 s2, 256"), I("s_cbranch_scc1 k_end")]
    o += load_ptrs()
    o += KA.decode_ids()
    o.append(WaitLG())
    o += all_srds()
    if prof: o += stamp(0)
    o += decode_extra()
    o += ln_part(touch_w() if cfg.get("touch_w", 1) else [])
    o += KA.lane_consts()
    bl, bi = bias_init()
    fv, fs = flag_store(SF1S, 20, 21)
    o += fv + poll_prep(7, 22)
    o += [WaitVM("xs"), I("s_barrier"), fs]
    o += bl + flat(w_ops(0)) + flat(w_ops(1))
    o += [I(f"s_lshl_b32 s{SXA}, s{STA}, 15"), I(f"s_lshl_b32 s{SXB}, s{STB}, 15"), I(f"s_mov_b32 s{STH}, {hexf(16.0)}")]
    o += [poll_load(SF1P, 22, 23, "pf1")]
    o += bi
    o += [WaitVM("pf1")] + poll_check("h1", SF1P, 22, 23, subs)
    if prof == 1: o += stamp(1)
    for s in range(4): o += flat(xn_ops(s))
    o += [WaitVM("D0"), I("s_barrier")]
    o += a_reads(0) + [WaitVM("xn0"), WaitLG("a0_2")]
    tv, tg = touch_kv(MXA, 128)
    o += KA.phase_a(cfg.get("pace", 2.5), tail_ops=tg if cfg.get("touch_kv", 1) else [], valu=tv)
    if prof == 1: o += stamp(2)
    body, spill, dmaq = KA.phase_b_prologue(SC1)
    o += body
    pb, q = phase_b(spill, dmaq, subs, cfg=cfg, prof={15: 3} if prof == 1 else None)
    o += pb
    if prof == 1: o += stamp(4)
    o += p3(q, subs, cfg)
    if prof == 1: o += stamp(5)
    o += p4(subs, cfg)
    if prof == 1: o += stamp(6)
    o += exchange(subs)
    o += [WaitVM()]
    if prof: o += stamp(7) + write_stamps(8)
    o += [Label("k_end"), I("s_endpgm")]
    subs.append(("restart", restart_code()))
    return o, subs

def build(path, prof=0, cfg=None):
    hdr = open("recurrent_scan__sliding_block_cached__dense_activation_squared_relu__prompt.s.ref").read().split("; Override")[0]
    s = hdr + "; @launch grid=(256,1,1) block=(256,1,1) lds=163840\n"
    s += '.amdgcn_target "amdgcn-amd-amdhsa--gfx950"\n.text\n'
    main, subs = kernel(prof, cfg)
    t, errs, fin = kernel_text(NAME, main, subs)
    s += t + '.section .rodata,"a"\n' + desc(NAME, 512, 102, 256)
    for x in errs: print("ERR", x)
    open(path, "w").write(s)
    print(path, "errors:", len(errs), "bytes:", len(s), "instrs", sum(isinstance(x, I) for x in fin))

if __name__ == "__main__":
    import sys
    prof = 1 if "--prof" in sys.argv else 0
    cfg = {}
    for a in sys.argv[2:]:
        if "=" in a:
            k, v = a.split("="); cfg[k] = float(v) if "." in v else int(v)
    build(sys.argv[1], prof, cfg)
```

```python
from common import *
import common, math
import k_attn as KA
from k_attn import (mfma, is_scalar, is_mem, order_gap, slots, flat, pack, groups, qk, pv, sm_half, maxchain, init_tile,
                    k_dma, v_dma, k_read, v_read, h_epi, h_soff, o_epi, qconv, xn_ops, w_ops, a_reads, bias_init,
                    QA, QB, HXA, HXB, HYA, ASET, SA, SB, NEGA, NEGB, TRA, TRW, VWQ, VW1X, VW1Y, LANE16, KRD, VK, VV,
                    LA, LB, MXA, MXB, T0, T1, T2, XN, QF, KF, VF, SHEAD, SRT, STA, STB, SXA, SXB, SWL4, SWL2, ST, ST2, STH,
                    LDS_W1, LDS_K)

NAME = "recurrent_scan__sliding_block_cached__dense_activation_squared_relu__prompt_kernel"
FLAG_OFF = 44 << 20
OOB = 0x20000000
STAG, SF1S, SF1P, SF2S, SF2P, SF3S, SF3P, SF4S, SF4P, SEO, SE1, SHG, SR, SC_, STQ, SXO, SSPIN = range(64, 81)
SO, SWO, SH, SW2, SPART = 52, 54, 53, 55, 56
SWL1 = 81
SC1 = " sc1"
LDS_VOTE = 163840 - 64
LDS_LN = LDS_K + 49152
THR_BITS = f2u(16.0)
IC2 = 1.0 / (CSC * CSC)
FACC = 176; AS3 = lambda p: 192 + 4 * p
ACC = lambda t: 16 * t
AS4 = lambda p, t: 64 + 16 * p + 4 * t
TRA2 = 96; XR = 100; PR = 108; TMP = 132
VWO = VWQ; VW2 = VW1X; VXO = VW1Y; TRW2 = KRD

def stamp(k):
    return [I("s_memtime s[82:83]"), I("s_memrealtime s[100:101]"), I("s_waitcnt lgkmcnt(0)"),
            I(f"s_mov_b32 s{84+k}, s82"), I(f"s_mov_b32 s{92+k}, s100")]
def write_stamps(n):
    o = []; A = lambda t, **k: o.append(I(t, **k))
    A(f"s_lshl_b32 s{ST}, s2, 6"); A(f"s_add_u32 s{ST}, s{ST}, {STAMP_OFF + 256*64}")
    A("s_cmp_lg_u32 s3, 0"); A(f"s_cbranch_scc1 stamps_done")
    A(f"v_mov_b32 v1, 0")
    for k in range(n):
        A(f"v_mov_b32 v2, s{84+k}"); A(f"v_mov_b32 v3, s{92+k}")
        A(f"buffer_store_dword v2, v1, {srd(WS)}, s{ST} offen offset:{4*k}")
        A(f"buffer_store_dword v3, v1, {srd(WS)}, s{ST} offen offset:{32+4*k}")
        A("s_waitcnt vmcnt(0)")
    o.append(Label("stamps_done"))
    return o

def decode_extra():
    o = []; A = lambda t, **k: o.append(I(t, **k))
    A(f"s_lshr_b32 s{SHG}, s{SHEAD}, 3")
    A(f"s_and_b32 s{ST}, s{SHEAD}, 7")
    A(f"s_lshr_b32 s{ST2}, s{ST}, 2")
    A(f"s_lshl_b32 s{SR}, s{SRT}, 1"); A(f"s_add_u32 s{SR}, s{SR}, s{ST2}")
    A(f"s_and_b32 s{SC_}, s{ST}, 3")
    A(f"s_lshl_b32 s{STQ}, s{SR}, 2"); A(f"s_add_u32 s{STQ}, s{STQ}, s3")
    A(f"s_lshl_b32 s{SXO}, s{STQ}, 15"); A(f"s_lshl_b32 s{ST2}, s{SC_}, 8"); A(f"s_add_u32 s{SXO}, s{SXO}, s{ST2}")
    A(f"s_lshl_b32 s{ST2}, s{SHG}, 6"); A(f"s_add_u32 s{SXO}, s{SXO}, s{ST2}")
    A(f"s_lshl_b32 s{SF2P}, s{SRT}, 12"); A(f"s_add_u32 s{SF1P}, s{SF2P}, {FLAG_OFF}")
    A(f"s_lshl_b32 s{SEO}, s{SRT}, 7"); A(f"s_add_u32 s{SEO}, s{SEO}, {FLAG_OFF + 131072}")
    A(f"s_add_u32 s{SF2P}, s{SF1P}, 32768")
    A(f"s_lshl_b32 s{ST2}, s{SHEAD}, 7")
    A(f"s_add_u32 s{SF1S}, s{SF1P}, s{ST2}"); A(f"s_add_u32 s{SF2S}, s{SF1S}, 32768")
    A(f"s_add_u32 s{SF3S}, s{SF1S}, 65536"); A(f"s_add_u32 s{SF4S}, s{SF1S}, 98304")
    A(f"s_lshl_b32 s{ST2}, s{SHG}, 10"); A(f"s_add_u32 s{SF3P}, s{SF1P}, s{ST2}"); A(f"s_add_u32 s{SF3P}, s{SF3P}, 65536")
    A(f"s_lshl_b32 s{ST2}, s{ST}, 7"); A(f"s_add_u32 s{SF4P}, s{SF1P}, s{ST2}"); A(f"s_add_u32 s{SF4P}, s{SF4P}, 98304")
    A(f"s_lshl_b32 s{ST2}, s3, 10"); A(f"s_add_u32 s{SF1P}, s{SF1P}, s{ST2}")
    A(f"s_lshl_b32 s{SWL1}, s3, 10")
    A("s_cmp_eq_u32 s3, 0")
    for r in (SF1S, SF2S, SF3S, SF4S): A(f"s_cselect_b32 s{r}, s{r}, {OOB}")
    return o

def all_srds():
    o = []; A = lambda t, **k: o.append(I(t, **k))
    o += KA.srds()
    o += make_srd(XS, P_X, 2048 * 1024) + make_srd(OUT, P_OUT, 2048 * 1024)
    A(f"s_lshr_b32 s{ST}, s{SHEAD}, 3"); A(f"s_lshl_b32 s{ST}, s{ST}, 20")
    A(f"s_and_b32 s{ST2}, s{SHEAD}, 3"); A(f"s_lshl_b32 s{ST2}, s{ST2}, 8"); A(f"s_add_u32 s{ST}, s{ST}, s{ST2}")
    o += make_srd(WO, P_WO, 4096 * 1024, off_sgpr=ST, size_minus_off=True)
    A(f"s_lshr_b32 s{ST}, s{SHEAD}, 3"); A(f"s_lshl_b32 s{ST}, s{ST}, 6"); A(f"s_add_u32 s{ST}, s{ST}, s{ST2}")
    o += make_srd(W2, P_W2, 1376 * 1024, off_sgpr=ST, size_minus_off=True)
    o += make_srd(B2, P_B2, 1024, off_sgpr=ST, size_minus_off=True)
    return o

def lane0_voff(r):
    return [I(f"v_min_u32 v{r}, 1, v{LANE16}"), I(f"v_lshlrev_b32 v{r}, 31, v{r}")]
def flag_store(soff, vd, va, val=STAG):
    return lane0_voff(va) + [I(f"v_mov_b32 v{vd}, s{val}")], I(f"buffer_store_dword v{vd}, v{va}, {srd(WS)}, s{soff} offen sc1", tag=f"fl{soff}")
def poll_prep(mask, va, sh=3):
    return [I(f"v_and_b32 v{va}, {mask*16}, v{LANE16}"), I(f"v_lshlrev_b32 v{va}, {sh}, v{va}")]
def poll_load(soff, va, vd, tag):
    return I(f"buffer_load_dword v{vd}, v{va}, {srd(WS)}, s{soff} offen sc1", tag=tag)
def poll_check(name, soff, va, vd, subs):
    o = [I(f"v_cmp_ne_u32 vcc, s{STAG}, v{vd}"), I(f"s_cbranch_vccnz {name}_spin"), Label(f"{name}_ok")]
    subs.append((name, [Label(f"{name}_spin"), I(f"s_mov_b32 s{SSPIN}, 40000"), Label(f"{name}_l"),
        I("s_sleep 1"),
        I(f"buffer_load_dword v{vd}, v{va}, {srd(WS)}, s{soff} offen sc1"), I("s_waitcnt vmcnt(0)"),
        I(f"v_cmp_ne_u32 vcc, s{STAG}, v{vd}"), I(f"s_cbranch_vccz {name}_ok"),
        I(f"s_sub_u32 s{SSPIN}, s{SSPIN}, 1"), I(f"s_cmp_lg_u32 s{SSPIN}, 0"), I(f"s_cbranch_scc1 {name}_l"),
        I(f"s_branch {name}_ok")]))
    return o

def ln_part(touch_ops, prof=0):
    o = []; A = lambda t, **k: o.append(I(t, **k))
    A(f"s_lshl_b32 s52, s{SRT}, 5"); A(f"s_add_u32 s52, s52, s{SHEAD}")
    A("v_and_b32 v1, 63, v0"); A("v_and_b32 v3, 7, v1"); A("v_lshrrev_b32 v4, 3, v1")
    A("s_lshl_b32 s53, s3, 4"); A("v_add_u32 v5, s53, v4")
    A("s_lshl_b32 s54, s52, 13")
    A("v_lshlrev_b32 v6, 10, v3"); A("v_lshl_add_u32 v6, v5, 4, v6")
    A(f"buffer_load_dwordx4 v[8:11], v6, {srd(XS)}, s54 offen", tag="x0")
    A(f"buffer_load_dwordx4 v[12:15], v6, {srd(XS)}, s54 offen offset:128", tag="x1")
    A("v_mov_b32 v48, 0")
    A(f"buffer_load_dword v49, v48, {srd(WS)}, s{SEO} offen sc1", tag="e0")
    o += touch_ops
    A("s_lshr_b32 s53, s52, 2"); A("s_lshl_b32 s53, s53, 15"); A("s_and_b32 s54, s52, 3"); A("s_lshl_b32 s54, s54, 7")
    A("s_add_u32 s53, s53, s54")
    A("v_lshlrev_b32 v7, 4, v3"); A("v_lshl_add_u32 v7, v5, 9, v7"); A("v_add_u32 v50, 0x1000, v7")
    A("v_lshlrev_b32 v51, 4, v3"); A(f"v_add_u32 v51, {LDS_LN}, v51")
    A("s_lshl_b32 s54, s3, 2"); A("v_add_u32 v52, s54, v51")
    o.append(WaitVM("x1"))
    if prof == 2: o += stamp(2)
    for i in range(8):
        A(f"v_lshlrev_b32 v{16+2*i}, 16, v{8+i}"); A(f"v_and_b32 v{17+2*i}, 0xffff0000, v{8+i}")
    def reduce(ldsoff):
        A("s_nop 1")
        A("v_add_f32_dpp v33, v32, v32 row_ror:8 row_mask:0xf bank_mask:0xf")
        A("v_mov_b32 v34, v33"); A("s_nop 1"); A("v_permlane16_swap_b32 v33, v34"); A("v_add_f32 v33, v33, v34")
        A("v_mov_b32 v34, v33"); A("s_nop 1"); A("v_permlane32_swap_b32 v33, v34"); A("v_add_f32 v33, v33, v34")
        A(f"ds_write_b32 v52, v33 offset:{ldsoff}", tag=f"rw{ldsoff}", wr=(f"ln{ldsoff}", 0))
        o.append(WaitLG()); A("s_barrier")
        A(f"ds_read_b128 v[36:39], v51 offset:{ldsoff}", tag=f"rr{ldsoff}", rd=(f"ln{ldsoff}", 0))
        o.append(WaitLG())
        A("v_add_f32 v36, v36, v37"); A("v_add_f32 v38, v38, v39"); A("v_add_f32 v36, v36, v38")
    for i in range(8): A(f"v_add_f32 v{40+i}, v{16+2*i}, v{17+2*i}")
    for i in range(4): A(f"v_add_f32 v{40+i}, v{40+2*i}, v{41+2*i}")
    A("v_add_f32 v40, v40, v41"); A("v_add_f32 v42, v42, v43"); A("v_add_f32 v32, v40, v42")
    reduce(0)
    A(f"v_mul_f32 v35, {hexf(-1.0/512)}, v36")
    for i in range(16): A(f"v_add_f32 v{16+i}, v{16+i}, v35")
    for i in range(4):
        A(f"v_mul_f32 v{40+i}, v{16+4*i}, v{16+4*i}")
        for j in range(1, 4): A(f"v_fmac_f32 v{40+i}, v{16+4*i+j}, v{16+4*i+j}")
    A("v_add_f32 v40, v40, v41"); A("v_add_f32 v42, v42, v43"); A("v_add_f32 v32, v40, v42")
    reduce(128)
    A(f"v_mov_b32 v37, {hexf(1e-5)}"); A(f"v_fmac_f32 v37, {hexf(1.0/512)}, v36")
    A("v_rsq_f32 v37, v37"); A("s_nop 0"); A(f"v_mul_f32 v37, {hexf(CSC)}, v37")
    for i in range(16): A(f"v_mul_f32 v{16+i}, v{16+i}, v37")
    for i in range(8): A(f"v_cvt_pk_bf16_f32 v{8+i}, v{16+2*i}, v{17+2*i}")
    A(f"buffer_store_dwordx4 v[8:11], v7, {srd(WS)}, s53 offen sc1", tag="xs")
    A(f"buffer_store_dwordx4 v[12:15], v50, {srd(WS)}, s53 offen sc1", tag="xs")
    if prof == 2: o += stamp(3)
    o.append(WaitVM("e0"))
    A(f"v_readfirstlane_b32 s{SE1}, v49")
    A("s_nop 1")
    A(f"s_mul_i32 s{STAG}, s{SE1}, 0x9E3779B1"); A(f"s_add_u32 s{STAG}, s{STAG}, 0x7F4A7C15")
    A(f"s_add_u32 s{SE1}, s{SE1}, 1")
    A(f"s_or_b32 s{ST}, s{SHEAD}, s3"); A(f"s_cmp_eq_u32 s{ST}, 0"); A(f"s_cselect_b32 s{SEO}, s{SEO}, {OOB}")
    return o

def touch_w(rows_from=128):
    o = []; A = lambda t, **k: o.append(I(t, **k))
    A(f"s_and_b32 s55, s{SRT}, 3"); A("s_lshl_b32 s55, s55, 8")
    A("v_add_u32 v53, s55, v0")
    A("v_lshrrev_b32 v54, 1, v53")
    A("v_and_b32 v55, 1, v53")
    A("v_lshlrev_b32 v56, 13, v54"); A("v_lshl_add_u32 v56, v55, 7, v56")
    A(f"buffer_load_dword v60, v56, {srd(WQ)}, 0 offen", tag="t0")
    A("v_mul_u32_u24 v57, 2752, v54")
    A(f"s_lshl_b32 s56, s{SHEAD}, 6")
    A(f"s_lshr_b32 s55, s{SHEAD}, 1"); A("s_lshl_b32 s55, s55, 6"); A("s_add_u32 s55, s55, 2048"); A("s_sub_u32 s55, s55, s56")
    A("v_mul_u32_u24 v58, s55, v55"); A("v_add_u32 v57, v57, v58")
    A(f"buffer_load_dword v61, v57, {srd(W1)}, s56 offen", tag="t1")
    return o

def touch_kv(va, vd):
    val = [I(f"s_and_b32 s{ST}, s{SRT}, 3"), I(f"s_lshl_b32 s{ST}, s{ST}, 9"), I(f"s_lshl_b32 s{ST2}, s3, 7"), I(f"s_add_u32 s{ST}, s{ST}, s{ST2}"),
           I(f"v_lshlrev_b32 v{va}, 7, v{LANE16}"), I(f"v_add_u32 v{va}, s{ST}, v{va}")]
    return val, [[I(f"buffer_load_dword a{vd}, v{va}, {srd(KS)}, 0 offen", tag="tk")], [I(f"buffer_load_dword a{vd+1}, v{va}, {srd(VS)}, 0 offen", tag="tv")]]

def w2_ops(q):
    slot = {True: None}.get(False)
    if q < 8: reg = (f"W{q//2}", 200)
    else: reg = (f"K{(q-8)//4}", 200)
    return [[I(f"s_add_u32 m0, s{SWL1}, {LDS_W1 + q*4096}"), I(f"s_mov_b32 s{SW2}, {q*65536}"),
             I(f"buffer_load_dwordx4 v{VW2}, {srd(W2)}, s{SW2} offen lds", tag=f"W2{q}", wr=reg)]]
def w2_region(q): return (f"W{q//2}", 200) if q < 8 else (f"K{(q-8)//4}", 200)
def HF(s):
    if s < 32: return 128 + 4 * s
    if s < 64: return 4 * (s - 32)
    return 128 + 4 * (s - 64)
def h_ops(s):
    pre = [I(f"s_add_u32 s{SH}, s{SH}, 4096")] if (s % 4 == 0 and s > 0) else []
    return [pre + [I(f"buffer_load_dwordx4 {ar(HF(s))}, v{LANE16}, {srd(WS)}, s{SH} offen offset:{1024*(s%4)} sc1", tag=f"h{s}")]]
def p3_reads(s):
    off = s * 1024; base = TRW
    if off >= 65536: base = TRW2; off -= 65536
    return [I(f"ds_read_b64_tr_b16 {vr(AS3(s % 4) + 2*j2, 2)}, v{base} offset:{off + j2*256}", tag=f"w{s}", rd=w2_region(s // 4)) for j2 in range(2)]
def wo_region(ch):
    slot = ch % 8
    if slot < 4: return (f"A{slot}", 300 + ch)
    return (f"P{slot}", 300 + ch)
def wo_ops(ch):
    slot = ch % 8; g = []
    for j in range(4):
        pre = [I(f"s_add_u32 m0, s{SWL4}, {slot*16384}"), I(f"s_mov_b32 s{SWO}, {ch*65536}")] if j == 0 else []
        g.append(pre + [I(f"buffer_load_dwordx4 v{VWO+j}, {srd(WO)}, s{SWO} offen offset:{1024*j} lds", tag=f"WO{ch}", wr=wo_region(ch))])
    return g
def OF(s): return 4 * ((s + 32) % 64)
def o_ops(s):
    pre = [I(f"s_add_u32 s{SO}, s{SO}, 4096")] if (s % 4 == 0 and s > 0) else []
    return [pre + [I(f"buffer_load_dwordx4 {ar(OF(s))}, v{LANE16}, {srd(WS)}, s{SO} offen offset:{1024*(s%4)} sc1", tag=f"o{s}")]]
def p4_reads(s):
    ch, sp = divmod(s, 4); slot = ch % 8; p = s % 2
    base = TRA if slot < 4 else TRA2
    return [I(f"ds_read_b64_tr_b16 {vr(AS4(p, t) + 2*j2, 2)}, v{base+t} offset:{(slot % 4)*16384 + sp*4096 + j2*1024}", tag=f"p{s}_{t}", rd=wo_region(ch))
            for t in range(4) for j2 in range(2)]

def out_voffs():
    o = []; A = lambda t: o.append(I(t))
    A(f"v_and_b32 v{T0}, 0xf0, v{VV}")
    A(f"v_and_b32 v{VWO}, 0x300, v{LANE16}")
    A(f"v_lshl_add_u32 v{VWO}, v{VWO}, 2, v{T0}")
    A(f"s_lshl_b32 s{ST}, s3, 14")
    A(f"v_add_u32 v{VWO}, s{ST}, v{VWO}")
    for j in range(1, 4): A(f"v_add_u32 v{VWO+j}, {j*3072}, v{VWO}")
    A(f"v_and_b32 v{T0}, 0x3c0, v{LANE16}")
    A(f"v_and_b32 v{VW2}, 0x30, v{LANE16}")
    A(f"v_lshl_add_u32 v{VW2}, v{T0}, 4, v{VW2}")
    A(f"v_add_u32 v{VW2}, s{ST}, v{VW2}")
    A(f"v_and_b32 v{T0}, 0x1f0, v{LANE16}")
    A(f"v_lshrrev_b32 v{VXO}, 9, v{LANE16}")
    A(f"v_lshlrev_b32 v{VXO}, 4, v{VXO}")
    A(f"v_lshl_add_u32 v{VXO}, v{T0}, 6, v{VXO}")
    return o

def touch_out(va, vb, ad):
    val = [I(f"s_and_b32 s{ST}, s{SR}, 7"), I(f"s_lshl_b32 s{ST}, s{ST}, 2"), I(f"s_add_u32 s{ST}, s{ST}, s3"),
           I(f"s_lshl_b32 s{ST2}, s{ST}, 15"),
           I(f"v_lshrrev_b32 v{va}, 5, v{LANE16}"), I(f"v_lshlrev_b32 v{va}, 10, v{va}"),
           I(f"v_and_b32 v{vb}, 16, v{LANE16}"), I(f"v_lshl_add_u32 v{va}, v{vb}, 3, v{va}"),
           I(f"v_add_u32 v{va}, s{ST2}, v{va}"),
           I(f"s_mul_i32 s{ST2}, s{ST}, {43*1024}"), I(f"v_lshlrev_b32 v{vb}, 6, v{LANE16}"), I(f"v_add_u32 v{vb}, s{ST2}, v{vb}")]
    g1 = [I(f"buffer_load_dword a{ad}, v{va}, {srd(WO)}, 0 offen", tag="two")]
    g2 = [I(f"buffer_load_dword a{ad+1}, v{vb}, {srd(W2)}, 0 offen", tag="tw2")]
    return val, g1, g2

class Q:
    def __init__(self): self.items = []; self.n = 0; self.sticky = None
    def add(self, prio, gs, earliest=0):
        for g in gs:
            self.items.append((prio, self.n, earliest, g)); self.n += 1
    @staticmethod
    def follower(g): return g[-1].text.endswith(" lds") and not any("m0" in x.text for x in g[:-1])
    def pop(self, now):
        if self.sticky is not None:
            nx = [x for x in self.items if x[1] == self.sticky + 1 and Q.follower(x[3])]
            if nx:
                self.items.remove(nx[0]); self.sticky = nx[0][1]; return nx[0][3]
        c = sorted((x for x in self.items if x[2] <= now), key=lambda x: x[:2])
        if not c: return None
        assert not Q.follower(c[0][3])
        self.items.remove(c[0]); self.sticky = c[0][1]; return c[0][3]

def phase_b(spill, dmaq0, subs, restart=False, prof=None, cfg=None):
    cfg = cfg or {}
    o = []
    NI = 16
    q = Q()
    if not restart: q.add(0, dmaq0)
    def addhead(gaps, k, items): gaps[k] = order_gap(items + gaps[k])
    sparev = {}
    if not restart:
        fv, fs = flag_store(SF2S, T1, T2)
        tv, tg1, tg2 = touch_out(T0, T1, 130)
        ev, es = flag_store(SEO, T1, T2, val=SE1)
        TI = cfg.get("touch_it", 3)
        sparev[1] = out_voffs(); sparev[2] = fv
        q.add(-1, [[fs]], 2)
        q.add(2, flat([w2_ops(x) for x in range(8)]), TI + 2)
        sparev[TI] = tv; q.add(1, [tg1, tg2], TI)
        PI = 4
        assert TI < PI
        sparev[PI] = poll_prep(31, T0) + [I(f"s_mul_i32 s{SH}, s{STQ}, {86*1024}"), I(f"s_add_u32 s{SH}, s{SH}, {H_OFF}")]
        q.add(1, [[poll_load(SF2P, T0, T1, "pf2")]], PI)
        sparev[7] = ev; q.add(1, [[es]], 7)
        q.add(3, flat([h_ops(s) for s in range(32)]), 6)
        q.add(2, flat([w2_ops(x) for x in range(8, 12)]), 8)
        q.add(2, flat([w2_ops(x) for x in range(12, 16)]), 10)
        q.add(2, flat([w2_ops(x) for x in range(16, 20)]), 12)
        q.add(2, flat([w2_ops(x) for x in range(20, 22)]), 14)
        q.add(4, wo_ops(0), 10); q.add(4, wo_ops(1), 12); q.add(4, wo_ops(2), 14)
        sparev[14] = [I(f"v_add_u32 v{TRW2}, 0x10000, v{TRW}"), I(f"v_and_b32 v{T0}, 16, v{VXO}")]
        q.add(1, [[I(f"buffer_load_dwordx4 {vr(208)}, v{T0}, {srd(B2)}, 0 offen", tag="b2")],
                  [I(f"buffer_load_dwordx4 {vr(212)}, v{T0}, {srd(B2)}, 0 offen offset:32", tag="b2")]], 14)
    for i in range(NI):
        if restart and i == 1: break
        if i == 1: o.append(Label("it1_entry"))
        if prof and i in prof: o += stamp(prof[i])
        last = i == NI - 1
        g_, par = divmod(i, 2)
        Sa, Sb = SA[i % 2], SB[i % 2]; San, Sbn = SA[(i + 1) % 2], SB[(i + 1) % 2]
        sp = list(sparev.get(i, []))
        def sprinkle(gaps):
            for k in range(8):
                while sp and is_scalar(sp[0]): gaps[k].append(sp.pop(0))
                if sp: gaps[k].append(sp.pop(0))
        def smgaps(S, h2, l):
            nonlocal spill
            sm = sm_half(S, h2, l)
            gaps = [list(x) for x in sm[:8]]
            gaps[0] = [gaps[0][0]] + spill + gaps[0][1:]
            spill = sm[8]
            return gaps
        def vmfill(gaps, ks):
            for k in ks:
                g = q.pop(i)
                if g:
                    sc = g[:-1]
                    if k > 0 and (k - 1) not in ks: addhead(gaps, k - 1, sc); addhead(gaps, k, g[-1:])
                    else: addhead(gaps, k, g)
        ms = qk(0, i + 1) if not last else []
        gaps = smgaps(Sa, 1, LA)
        mc = maxchain(Sb, MXB, first=(i == 0 and not restart))
        for k in range(4): gaps[2 * k + 1].append(mc[4 + k])
        vr_ = [v_read(i, 0, t, j2) for t in range(4) for j2 in range(2)]
        if i == 0 and not restart:
            he = h_epi(HXB, h_soff(STB, False), SC1)
            st = [x for x in he if is_mem(x)]; he = [x for x in he if not is_mem(x)]
            gaps = merge(gaps, spread(he, 8, 0, 7))
            gaps[5].append(st[0]); gaps[7].append(st[1])
        for k in range(8): addhead(gaps, k, [vr_[k]])
        sprinkle(gaps)
        if not last:
            w = [WaitLG(f"k{i+1}_7")]
            if par == 0:
                tg = [f"K{g_+1}", f"V{g_+1}"] if g_ <= 6 else []
                if i == 2: tg.append("hst")
                if i == 6: tg.append("pf2")
                if restart: tg = []
                w = ([WaitVM(*tg)] if tg else []) + w + [I("s_barrier")]
                if not restart:
                    if g_ + 4 <= 7: q.add(0, groups(k_dma(g_ + 4)), i)
                    if g_ + 3 <= 7: q.add(0, groups(v_dma(g_ + 3)), i)
            gaps[3] = w + gaps[3]
            o += weave(ms, gaps)
        else:
            for k in range(8): o += gaps[k]
            o += [I(f"v_max_f32 v{T2}, v{MXA}, v{MXB}"), I(f"s_lshl_b32 s{ST}, s3, 2"), I(f"v_cmp_lt_f32 vcc, s{STH}, v{T2}"),
                  I(f"s_add_u32 s{ST}, s{ST}, {LDS_VOTE}"), I(f"v_mov_b32 v{T0}, s{ST}"),
                  I("s_cmp_lg_u64 vcc, 0"), I(f"s_cselect_b32 s{ST2}, 1, 0"), I(f"v_mov_b32 v{T1}, s{ST2}"),
                  I(f"ds_write_b32 v{T0}, v{T1}", tag="vw", wr=("vote", 0))]
        if i == 6 and not restart: o += poll_check("h2", SF2P, T0, T1, subs)
        if i == 0 and not restart: o += init_tile(Sb, MXB, NEGB, LB)
        ms = qk(1, i + 1) if not last else []
        gaps = smgaps(Sb, 0, LB)
        mca = maxchain(San, MXA) if not last else None
        if not last:
            for k, gp in enumerate((3, 5, 6, 7)): gaps[gp].append(mca[k])
        vr_ = [v_read(i, 1, t, j2) for t in range(4) for j2 in range(2)]
        for k in range(8): addhead(gaps, k, [vr_[k]])
        sprinkle(gaps)
        assert not sp, (i, sp)
        gaps[7] = [WaitLG(f"v{i}_0")] + gaps[7]
        if not last: o += weave(ms, gaps)
        else:
            gaps[2] = [WaitLG("vw"), I("s_barrier"), I(f"v_mov_b32 v{T0}, {LDS_VOTE}")] + gaps[2]
            gaps[4] = [I(f"ds_read_b128 {vr(216)}, v{T0}", tag="vr", rd=("vote", 0))] + gaps[4]
            for k in range(8): o += gaps[k]
            o += [WaitLG("vr"), I(f"v_or3_b32 v216, v216, v217, v218"), I(f"v_or_b32 v216, v216, v219"), I("s_nop 0"),
                  I(f"v_readfirstlane_b32 s{ST}, v216"), I("s_nop 1"), I(f"s_cmp_lg_u32 s{ST}, 0"), I("s_cbranch_scc1 restart")]
            q.add(3, flat([h_ops(s) for s in range(32, 56)]), i)
        ms = pv(0, i)
        gaps = smgaps(Sb, 1, LB)
        if not last:
            for k in range(4): gaps[2 * k + 1].append(mca[4 + k])
        if i + 2 < NI:
            for k in range(4): addhead(gaps, 2 * k, [k_read(i + 2, k)])
            vmfill(gaps, (1, 3, 5, 7))
        else: vmfill(gaps, range(8))
        if last:
            pre_a, body_a = o_epi(0, SC1)
            gaps = merge(gaps, spread(pre_a, 8, 1, 8))
        gaps[3] = [WaitLG(f"v{i}_1")] + gaps[3]
        o += weave(ms, gaps)
        ms = pv(1, i)
        if not last:
            gaps = smgaps(San, 0, LA)
            mc = maxchain(Sbn, MXB)
            for k in range(4): gaps[2 * k + 1].append(mc[k])
            if i + 2 < NI:
                for k in range(4): addhead(gaps, 2 * k, [k_read(i + 2, 4 + k)])
                vmfill(gaps, (1, 3, 5, 7))
                gaps[7] = [WaitLG(f"k{i+2}_3")] + gaps[7]
            else: vmfill(gaps, range(8))
            o += weave(ms, gaps)
        else:
            body, rest = pack(ms, spill + body_a)
            o += body + rest
            pre_b, body_b = o_epi(1, SC1)
            o += pre_b[:3] + [I("s_nop 0")] + pre_b[3:] + body_b
    if restart: return o
    return o, q

def restart_code():
    o = [Label("restart"), I("s_waitcnt vmcnt(0) lgkmcnt(0)"), I("s_nop 15"), I("s_barrier")]
    A = lambda t, **k: o.append(I(t, **k))
    for mx, neg, l in ((MXA, NEGA, LA), (MXB, NEGB, LB)):
        A(f"v_mov_b32 v{T2}, v{mx}"); A("s_nop 1"); A(f"v_permlane32_swap_b32 v{mx}, v{T2}"); A(f"v_max_f32 v{T2}, v{mx}, v{T2}")
        A(f"v_sub_f32 v{neg+15}, v{neg+15}, v{T2}")
        for r in range(15): A(f"v_mov_b32 v{neg+r}, v{neg+15}")
        A(f"v_mov_b32 v{mx}, 0"); A(f"v_mov_b32 v{l}, 0")
    A(f"s_mov_b32 s{STH}, 0x7f800000")
    A(f"v_xor_b32 v{KRD}, 32, v{KRD+1}")
    for p in range(3): o += k_dma(p) + v_dma(p)
    o += [WaitVM(), I("s_barrier")]
    o += [k_read(0, s) for s in range(8)] + [WaitLG()]
    o += qk(0, 0) + qk(1, 0)
    o += [k_read(1, s) for s in range(8)] + [I("s_nop 15")]
    o += maxchain(SA[0], MXA)
    g = sm_half(SA[0], 0, LA); mc = maxchain(SB[0], MXB)
    for k in range(8):
        o += g[k]
        if k % 2 == 1: o.append(mc[k // 2])
    o.append(WaitLG())
    o += phase_b(g[8], None, None, restart=True)
    o.append(I("s_branch it1_entry"))
    return o

def gate_valu():
    o = []; A = lambda t: o.append(I(t))
    A(f"s_mov_b32 s{ST}, {hexf(-IC2 * math.log2(math.e))}"); A(f"s_mov_b32 s{ST2}, {hexf(IC2)}")
    E = TMP + 16
    for r0 in range(0, 16, 4):
        R = range(r0, r0 + 4)
        for r in R: A(f"v_mul_f32 v{E+r-r0}, s{ST}, v{FACC+r}")
        for r in R: A(f"v_exp_f32 v{E+r-r0}, v{E+r-r0}")
        for r in R: A(f"v_mul_f32 v{FACC+r}, s{ST2}, v{FACC+r}")
        for r in R: A(f"v_add_f32 v{E+r-r0}, 1.0, v{E+r-r0}")
        for r in R: A(f"v_rcp_f32 v{E+r-r0}, v{E+r-r0}")
        A("s_nop 0")
        for r in R: A(f"v_mul_f32 v{FACC+r}, v{FACC+r}, v{E+r-r0}")
    return o

def p3(q, subs, cfg):
    o = []; NS = 86
    left = []
    while True:
        g = q.pop(99)
        if not g: break
        left.append(g)
    o += [WaitVM("b2"), I(f"s_mov_b32 s{ST2}, {hexf(CSC*CSC)}")]
    for m in range(8):
        o.append(I(f"v_lshlrev_b32 v{FACC+2*m}, 16, v{208+m}")); o.append(I(f"v_and_b32 v{FACC+2*m+1}, 0xffff0000, v{208+m}"))
    for r in range(16): o.append(I(f"v_mul_f32 v{FACC+r}, s{ST2}, v{FACC+r}"))
    ops = left + flat([h_ops(s) for s in range(56, 64)])
    fv, fs = flag_store(SF3S, T1, T2)
    o += fv
    o += [WaitVM("W219"), I("s_barrier")]
    o += p3_reads(0) + p3_reads(1)
    ops += wo_ops(3)
    late = flat([h_ops(s) for s in range(64, 86)])
    FL = cfg.get("f3_step", 12)
    PL = cfg.get("p3_poll", 70)
    pi = 0; li = 0
    for s in range(NS):
        m = mfma(vr(FACC, 16), vr(AS3(s % 4)), ar(HF(s)), vr(FACC, 16))
        pre = [WaitVM(f"h{s}"), WaitLG(f"w{s}")]
        gap = []
        if s == FL: gap += [WaitVM("ost", "W221"), I("s_barrier"), fs]
        if s + 2 < NS: gap += p3_reads(s + 2)
        if pi < len(ops): gap += ops[pi]; pi += 1
        elif li < len(late) and 64 + li - 64 < s: gap += late[li]; li += 1
        if s == PL - 2: gap += poll_prep(7, T0) + [I(f"s_lshl_b32 s{SO}, s{STQ}, 18"), I(f"s_lshl_b32 s{ST}, s{SHG}, 16"), I(f"s_add_u32 s{SO}, s{SO}, s{ST}"), I(f"s_add_u32 s{SO}, s{SO}, {O_OFF}")]
        if s == PL: gap += [poll_load(SF3P, T0, T1, "pf3")]
        o += pre + [m] + gap
    assert pi == len(ops) and li == len(late), (pi, len(ops), li)
    return o

def p4(subs, cfg):
    o = []; NS = 64
    pace = cfg.get("p4_pace", 1.5)
    o += [WaitVM("pf3")] + poll_check("h3", SF3P, T0, T1, subs)
    for s in range(6): o += flat(o_ops(s))
    for t in range(4): o.append(I(f"v_add_u32 v{TRA2+t}, 0x10000, v{TRA+t}"))
    o += [WaitVM("WO3"), I("s_barrier")]
    o += p4_reads(0)
    def M(g): return (8 * g + 6) * 4 + 3
    ops = []
    for g in range(2, 8):
        e = M(g - 3) + 1 if g >= 4 else 0
        ops += [(M(g - 1), x, e) for x in wo_ops(2 * g) + wo_ops(2 * g + 1)]
    for s in range(6, 64): ops += [(4 * s - 1, x, 0) for x in o_ops(s)]
    ops += [(200, [x], 0) for x in x_load()]
    ops.sort(key=lambda z: z[0])
    heads = [[] for _ in range(NS * 4 + 64)]
    pos = 0.0
    for _, g, e in ops:
        pos = max(pos, e); heads[int(pos)] += g; pos += pace
    assert int(pos - pace) < (NS - 2) * 4, pos
    valu = gate_valu()
    o += [WaitVM("o0"), WaitLG("p0_1")]
    for s in range(NS):
        p = s % 2
        ms = [mfma(vr(ACC(t), 16), vr(AS4(p, t)), ar(OF(s)), "0" if s == 0 else vr(ACC(t), 16)) for t in range(4)]
        rd = p4_reads(s + 1) if s + 1 < NS else []
        gaps = [rd[0:3], rd[3:6], rd[6:8], []]
        for k in range(4):
            pre = []
            if k == 1: pre.append(WaitLG(f"p{s}_3"))
            if k == 3 and s + 1 < NS:
                tg = [f"o{s+1}"]
                bar = s % 8 == 6 and 1 <= s // 8 < 7
                if bar: tg.append(f"WO{2*(s//8)+3}")
                pre += [WaitVM(*tg), WaitLG(f"p{s+1}_1")]
                if bar: pre.append(I("s_barrier"))
            h = heads[s * 4 + k]
            sc = [x for x in h if is_scalar(x)]; me = [x for x in h if not is_scalar(x)]
            gaps[k] = pre + sc + gaps[k] + me
            c = sum(slots(x) for x in gaps[k]) - 1
            while valu and c + slots(valu[0]) <= 6 and s >= 2:
                c += slots(valu[0]); gaps[k].append(valu.pop(0))
        o += weave(ms, gaps)
    assert not valu
    return o

def x_load():
    return [I(f"buffer_load_dwordx4 {vr(XR)}, v{VXO}, {srd(XS)}, s{SXO} offen", tag="xr"),
            I(f"buffer_load_dwordx4 {vr(XR+4)}, v{VXO}, {srd(XS)}, s{SXO} offen offset:32", tag="xr")]

def exchange(subs):
    o = []; A = lambda t, **k: o.append(I(t, **k))
    A(f"s_lshl_b32 s{SPART}, s{SR}, 2"); A(f"s_add_u32 s{SPART}, s{SPART}, s{SC_}"); A(f"s_lshl_b32 s{SPART}, s{SPART}, 17")
    A(f"s_add_u32 s{SPART}, s{SPART}, {PART_OFF}"); A(f"s_add_u32 s{SPART}, s{SPART}, s{SWL2}")
    A(f"s_lshl_b32 s{ST}, s{SHG}, 13"); A(f"s_add_u32 s{SO}, s{SPART}, s{ST}")
    fv, fs = flag_store(SF4S, T1, T2)
    o += fv + poll_prep(3, T0, 6)
    A("s_nop 4")
    for t in range(4):
        A(f"s_add_u32 s{ST2}, s{SO}, {t << 15}"); A(f"s_cmp_eq_u32 s{SHG}, {t}"); A(f"s_cselect_b32 s{ST2}, {OOB}, s{ST2}")
        for half in range(2):
            b = ACC(t) + 8 * half; d = 64 + 8 * t + 4 * half
            for m in range(4): A(f"v_cvt_pk_bf16_f32 v{d+m}, v{b+2*m}, v{b+2*m+1}")
            A(f"buffer_store_dwordx4 {vr(d)}, v{LANE16}, {srd(WS)}, s{ST2} offen offset:{1024*half} sc1", tag="pst")
    for t in range(4):
        A(f"s_cmp_eq_u32 s{SHG}, {t}"); A(f"s_cbranch_scc0 own{t}_skip")
        for r in range(16): A(f"v_mov_b32 v{TMP+r}, v{ACC(t)+r}")
        o.append(Label(f"own{t}_skip"))
    o += [WaitVM("pst"), I("s_barrier"), fs]
    o += [poll_load(SF4P, T0, T1, "pf4"), WaitVM("pf4")] + poll_check("h4", SF4P, T0, T1, subs)
    A(f"s_lshl_b32 s{ST}, s{SHG}, 15"); A(f"s_add_u32 s{SPART}, s{SPART}, s{ST}")
    for k in range(3):
        A(f"s_add_u32 s{ST}, s{SHG}, {k+1}"); A(f"s_and_b32 s{ST}, s{ST}, 3"); A(f"s_lshl_b32 s{ST}, s{ST}, 13"); A(f"s_add_u32 s{ST2}, s{SPART}, s{ST}")
        for half in range(2):
            A(f"buffer_load_dwordx4 {vr(PR + 8*k + 4*half)}, v{LANE16}, {srd(WS)}, s{ST2} offen offset:{1024*half} sc1", tag=f"pld{k}")
    S = TMP + 16
    for k in range(3):
        o.append(WaitVM(f"pld{k}"))
        for m in range(8):
            A(f"v_lshlrev_b32 v{S}, 16, v{PR+8*k+m}"); A(f"v_and_b32 v{S+1}, 0xffff0000, v{PR+8*k+m}")
            A(f"v_add_f32 v{TMP+2*m}, v{TMP+2*m}, v{S}"); A(f"v_add_f32 v{TMP+2*m+1}, v{TMP+2*m+1}, v{S+1}")
    for half in range(2):
        for m in range(4):
            k = 4 * half + m
            A(f"v_lshlrev_b32 v{S}, 16, v{XR+k}"); A(f"v_and_b32 v{S+1}, 0xffff0000, v{XR+k}")
            A(f"v_fmac_f32 v{S}, v{TMP+2*k}, v{FACC+2*k}"); A(f"v_fmac_f32 v{S+1}, v{TMP+2*k+1}, v{FACC+2*k+1}")
            A(f"v_cvt_pk_bf16_f32 v{XR+k}, v{S}, v{S+1}")
        A(f"buffer_store_dwordx4 {vr(XR+4*half)}, v{VXO}, {srd(OUT)}, s{SXO} offen offset:{32*half}", tag="out")
    return o

def kernel(prof=0, cfg=None):
    cfg = cfg or {}
    KA.XN_MODS = SC1
    subs = []
    o = [I("s_cmp_ge_u32 s2, 256"), I("s_cbranch_scc1 k_end")]
    o += load_ptrs()
    nct = cfg.get("code_touch", 2)
    if nct:
        o += [I("s_getpc_b64 s[60:61]"), Label("code_base"), I("v_lshlrev_b32 v62, 7, v0"), I("global_load_dword v63, v62, s[60:61]", tag="ct"),
              I("v_add_u32 v62, 0x8000, v62"), I("v_min_u32 v62, code_end-code_base-4, v62"), I("global_load_dword v2, v62, s[60:61]", tag="ct")]
    if prof: o += [I("s_memtime s[90:91]"), I("s_memrealtime s[98:99]")]
    o += KA.decode_ids()
    o.append(WaitLG())
    o += all_srds()
    if prof: o += [I("s_mov_b32 s84, s90"), I("s_mov_b32 s92, s98")]
    if prof == 2: o += stamp(1)
    o += decode_extra()
    o += ln_part(touch_w() if cfg.get("touch_w", 1) else [], prof)
    o += KA.lane_consts()
    bl, bi = bias_init()
    fv, fs = flag_store(SF1S, 20, 21)
    o += fv + poll_prep(7, 22)
    o += [WaitVM("xs")]
    if prof == 2: o += stamp(4)
    o += [I("s_barrier"), fs]
    o += bl + flat(w_ops(0)) + flat(w_ops(1))
    o += [I(f"s_lshl_b32 s{SXA}, s{STA}, 15"), I(f"s_lshl_b32 s{SXB}, s{STB}, 15"), I(f"s_mov_b32 s{STH}, {hexf(16.0)}")]
    o += [poll_load(SF1P, 22, 23, "pf1")]
    o += bi
    o += [WaitVM("pf1")] + poll_check("h1", SF1P, 22, 23, subs)
    if prof == 1: o += stamp(1)
    if prof == 2: o += stamp(5)
    for s in range(4): o += flat(xn_ops(s))
    o += [WaitVM("D0"), I("s_barrier")]
    o += a_reads(0) + [WaitVM("xn0"), WaitLG("a0_2")]
    if prof == 2: o += stamp(6)
    tv, tg = touch_kv(MXA, 128)
    o += KA.phase_a(cfg.get("pace", 2.5), tail_ops=tg if cfg.get("touch_kv", 1) else [], valu=tv)
    if prof == 1: o += stamp(2)
    body, spill, dmaq = KA.phase_b_prologue(SC1)
    o += body
    pb, q = phase_b(spill, dmaq, subs, cfg=cfg, prof={15: 3} if prof == 1 else {0: 1, 2: 2, 4: 3, 6: 4, 8: 5, 11: 6, 14: 7} if prof == 3 else None)
    o += pb
    if prof == 1: o += stamp(4)
    o += p3(q, subs, cfg)
    if prof == 1: o += stamp(5)
    o += p4(subs, cfg)
    if prof == 1: o += stamp(6)
    o += exchange(subs)
    o += [WaitVM()]
    if prof: o += (stamp(7) if prof != 3 else []) + write_stamps(8)
    o += [Label("k_end"), I("s_endpgm")]
    subs.append(("restart", restart_code()))
    return o, subs

def build(path, prof=0, cfg=None):
    hdr = open("recurrent_scan__sliding_block_cached__dense_activation_squared_relu__prompt.s.ref").read().split("; Override")[0]
    s = hdr + "; @launch grid=(256,1,1) block=(256,1,1) lds=163840\n"
    s += '.amdgcn_target "amdgcn-amd-amdhsa--gfx950"\n.text\n'
    main, subs = kernel(prof, cfg)
    t, errs, fin = kernel_text(NAME, main, subs)
    s += t + 'code_end:\n.section .rodata,"a"\n' + desc(NAME, 512, 102, 256)
    for x in errs: print("ERR", x)
    open(path, "w").write(s)
    print(path, "errors:", len(errs), "bytes:", len(s), "instrs", sum(isinstance(x, I) for x in fin))

if __name__ == "__main__":
    import sys
    prof = 3 if "--prof3" in sys.argv else 2 if "--prof2" in sys.argv else 1 if "--prof" in sys.argv else 0
    cfg = {}
    for a in sys.argv[2:]:
        if "=" in a:
            k, v = a.split("="); cfg[k] = float(v) if "." in v else int(v)
    build(sys.argv[1], prof, cfg)
```
